```python
import torch

def _softmax(x, axis=-1):
    return torch.softmax(x, dim=axis)

def _gelu(x):
    return torch.nn.functional.gelu(x, approximate='tanh')

def _silu(x):
    return torch.nn.functional.silu(x)

def _sigmoid(x):
    return torch.sigmoid(x)

def _layernorm(x, axis=-1, eps=1e-05):
    m = x.mean(dim=axis, keepdim=True)
    v = x.var(dim=axis, keepdim=True, unbiased=False)
    return (x - m) / torch.sqrt(v + eps)

def _scatter_add(tgt, idx, src, axis=0):
    return tgt.clone().index_add_(axis, idx, src)

def _segment_sum(src, seg, n):
    out = torch.zeros((n,) + src.shape[1:], dtype=src.dtype)
    return out.index_add_(0, seg, src)

def _pad(x, pw):
    flat = tuple((v for pair in reversed(pw) for v in pair))
    return torch.nn.functional.pad(x, flat)
kernel_name = 'adaLN_cond__gqa_block_cached__glu_gated_bilinear__decode'

def setup_inputs():

    _w = lambda a: (lambda t: t.to(torch.bfloat16) if t.is_floating_point() else t)(torch.as_tensor(a))

    def _A_setup():
        B, Sq, D = (1, 1, 512)
        Hq, Hkv, Sk, Dh = (32, 32, 4096, 128)
        assert Hq % Hkv == 0, (Hq, Hkv)
        return {'x': _w((lambda *s: torch.randn(*s, dtype=torch.bfloat16) * 0.05)(B, Sq, D)), 'k_cache': _w((lambda *s: torch.randn(*s, dtype=torch.bfloat16) * 0.8)(B, Hkv, Sk, Dh)), 'v_cache': _w((lambda *s: torch.randn(*s, dtype=torch.bfloat16) * 3.2)(B, Hkv, Sk, Dh)), 'wq': _w((lambda *s: torch.randn(*s, dtype=torch.bfloat16) * 0.8)(D, Hq * Dh) * D ** (-0.5)), 'wo': _w((lambda *s: torch.randn(*s, dtype=torch.bfloat16) * 3.2)(Hq * Dh, D) * (Hq * Dh) ** (-0.5))}
    _A_in = _A_setup()

    def _B_setup():
        B, S, D, F = (1, 1, 512, 1376)
        return {'x': _w((lambda *s: torch.randn(*s, dtype=torch.bfloat16) * 0.05)(B, S, D)), 'w_gate': _w((lambda *s: torch.randn(*s, dtype=torch.bfloat16) * 3.2)(D, F) * D ** (-0.5)), 'w_up': _w((lambda *s: torch.randn(*s, dtype=torch.bfloat16) * 3.2)(D, F) * D ** (-0.5)), 'w_down': _w((lambda *s: torch.randn(*s, dtype=torch.bfloat16) * 3.2)(F, D) * F ** (-0.5))}
    _B_in = _B_setup()
    return {'A_x': _A_in['x'], 'A_k_cache': _A_in['k_cache'], 'A_v_cache': _A_in['v_cache'], 'A_wq': _A_in['wq'], 'A_wo': _A_in['wo'], 'B_x': _B_in['x'], 'B_w_gate': _B_in['w_gate'], 'B_w_up': _B_in['w_up'], 'B_w_down': _B_in['w_down'], 'c': _w((lambda *s: torch.randn(*s, dtype=torch.bfloat16) * 0.4)(1, 512) * 8.0), 'w_mod': _w((lambda *s: torch.randn(*s, dtype=torch.bfloat16) * 0.4)(512, 6 * 512) * 512 ** (-0.5) * 8.0)}

def reference(A_x, A_k_cache, A_v_cache, A_wq, A_wo, B_x, B_w_gate, B_w_up, B_w_down, c, w_mod):

    def _A_ref(x, k_cache, v_cache, wq, wo):
        B, Sq, D = x.shape
        Hq, Dh = (32, 128)
        Hkv = k_cache.shape[1]
        rep = Hq // Hkv
        q = (lambda x, *d: x.permute(*d))((x @ wq).reshape(B, Sq, Hq, Dh), 0, 2, 1, 3)
        k = (lambda x, n, axis: torch.repeat_interleave(x, n, dim=axis))(k_cache, rep, axis=1)
        v = (lambda x, n, axis: torch.repeat_interleave(x, n, dim=axis))(v_cache, rep, axis=1)
        scores = torch.einsum('bhqd,bhkd->bhqk', q, k) * Dh ** (-0.5)
        p = _softmax(scores, axis=-1)
        o = torch.einsum('bhqk,bhkd->bhqd', p, v)
        return (lambda x, *d: x.permute(*d))(o, 0, 2, 1, 3).reshape(B, Sq, Hq * Dh) @ wo

    def _B_ref(x, w_gate, w_up, w_down):
        g = torch.einsum('bsd,df->bsf', x, w_gate)
        u = torch.einsum('bsd,df->bsf', x, w_up)
        h = g * u
        return torch.einsum('bsf,fd->bsd', h, w_down)
    x = A_x
    mod = (_silu(c) @ w_mod).reshape(c.shape[0], 6, 1, -1)
    sa, ca, ga, sb, cb, gb = (mod[:, 0].clone(), mod[:, 1].clone(), mod[:, 2].clone(), mod[:, 3].clone(), mod[:, 4].clone(), mod[:, 5].clone())
    h = _layernorm(x, axis=-1) * (1 + ca) + sa
    x = x + ga * _A_ref(h, A_k_cache, A_v_cache, A_wq, A_wo)
    h = _layernorm(x, axis=-1) * (1 + cb) + sb
    x = x + gb * _B_ref(h, B_w_gate, B_w_up, B_w_down)
    return x
```

```python
import re
TRANS = ("v_exp_f32", "v_log_f32", "v_rcp_f32", "v_rsq_f32", "v_sqrt_f32", "v_sin_f32", "v_cos_f32")
def regs(op):
    op = op.strip()
    neg = op.lstrip("-")
    m = re.fullmatch(r"abs\((.*)\)", neg)
    if m: neg = m.group(1)
    neg = neg.strip("|")
    m = re.fullmatch(r"([vs])(\d+)", neg)
    if m: return {(m.group(1), int(m.group(2)))}
    m = re.fullmatch(r"([vs])\[(\d+):(\d+)\]", neg)
    if m: return {(m.group(1), k) for k in range(int(m.group(2)), int(m.group(3)) + 1)}
    if neg == "vcc": return {("s", 106), ("s", 107)}
    if neg == "vcc_lo": return {("s", 106)}
    if neg == "vcc_hi": return {("s", 107)}
    return set()
def split_ops(s):
    out = []; depth = 0; cur = ""
    for ch in s:
        if ch in "[(": depth += 1
        if ch in "])": depth -= 1
        if ch == "," and depth == 0: out.append(cur.strip()); cur = ""
        else: cur += ch
    if cur.strip(): out.append(cur.strip())
    if out:
        last = out[-1].split()
        out[-1] = last[0]
    return out
class Ins:
    def __init__(self, text):
        self.text = text
        t = text.split(";")[0].strip()
        p = t.split(None, 1)
        self.mn = p[0]; ops = split_ops(p[1]) if len(p) > 1 else []
        mn = self.mn
        self.base = re.sub(r"_(e32|e64|dpp|sdwa)$", "", mn)
        self.dpp = mn.endswith("_dpp")
        self.mfma = mn.startswith("v_mfma") or mn.startswith("v_smfmac")
        self.valu = mn.startswith("v_") and not self.mfma
        self.trans = self.base in TRANS
        self.dot = mn.startswith("v_dot")
        self.vmem = mn.startswith("buffer_") or mn.startswith("global_")
        self.ds = mn.startswith("ds_")
        self.perm = mn.startswith("v_permlane")
        self.rdlane = mn.startswith("v_readlane") or mn.startswith("v_readfirstlane")
        self.w = set(); self.r = set(); self.srcC = set(); self.ab = set(); self.stdata = set(); self.lanesel = set()
        R = [regs(o) for o in ops]
        if self.mfma:
            self.w = R[0]; self.ab = R[1] | R[2]; self.srcC = R[3]; self.r = self.ab | self.srcC
        elif self.valu:
            if self.perm: self.w = R[0] | R[1]; self.r = R[0] | R[1]
            else:
                self.w = set(R[0]); rest = R[1:]
                if self.base in ("v_add_co_u32", "v_sub_co_u32", "v_addc_co_u32"): self.w |= R[1]; rest = R[2:]
                for x in rest: self.r |= x
                if self.base in ("v_dot2c_f32_bf16", "v_fmac_f32") or self.dpp: self.r |= R[0]
                if self.base == "v_dot2c_f32_bf16": self.srcC = R[0]; self.ab = R[1] | R[2]
                if self.base == "v_dot2_f32_bf16": self.srcC = R[3]; self.ab = R[1] | R[2]
                if self.base == "v_readlane_b32": self.lanesel = R[2]
        elif self.vmem:
            st = "store" in mn or ("atomic" in mn)
            if mn.startswith("buffer_"):
                if st: self.r = set().union(*R); self.stdata = R[0] if re.search(r"x[34]$", mn) else set()
                else: self.w = R[0]; self.r = set().union(*R[1:])
            else:
                if st: self.r = set().union(*R); self.stdata = R[1] if re.search(r"x[34]$", mn) else set()
                else: self.w = R[0]; self.r = set().union(*R[1:])
        elif self.ds:
            if "read" in mn or "rtn" in mn or "permute" in mn or "swizzle" in mn: self.w = R[0]; self.r = set().union(*R[1:])
            else: self.r = set().union(*R)
        self.states = 1
        if mn == "s_nop": self.states = int(ops[0], 0) + 1
def need(p, c):
    n = 0
    pv = {x for x in p.w if x[0] == "v"}; ps = {x for x in p.w if x[0] == "s"}
    if p.valu:
        if c.valu and c.dpp and (pv & c.r): n = max(n, 2)
        if c.perm and (pv & c.r): n = max(n, 2)
        if c.rdlane and (pv & c.r): n = max(n, 1)
        if p.trans and (pv & c.r): n = max(n, 1)
        if c.valu and (ps & c.r): n = max(n, 2)
        if c.valu and (ps & c.lanesel): n = max(n, 4)
        if c.vmem and (ps & c.r): n = max(n, 5)
        if c.mfma and (pv & c.r): n = max(n, 2)
        if p.dot and (pv & (c.r | c.w)):
            if c.base == p.base and not (pv & c.ab): pass
            else: n = max(n, 3)
    if p.mfma:
        if c.mfma:
            if pv & c.ab: n = max(n, 8)
            if pv & c.srcC and c.srcC != p.w: n = max(n, 6)
            if pv & c.w and c.srcC != p.w: n = max(n, 6)
        elif (c.valu or c.vmem or c.ds) and (pv & (c.r | c.w)): n = max(n, 8)
        if c.valu and (p.srcC & c.w): n = max(n, 3)
    if p.stdata and (p.stdata & c.w): n = max(n, 2)
    return n
class Asm:
    def __init__(self):
        self.L = []; self.hist = []; self.snap = {}; self.nnops = 0
    def raw(self, s): self.L.append(s)
    def label(self, name):
        self.L.append(name + ":")
        for h in self.snap.pop(name, []):
            self.hist = self.hist + h
    def __call__(self, text):
        for t in text.split("\n"):
            t = t.strip()
            if not t: continue
            if t.endswith(":"): self.label(t[:-1]); continue
            if t.startswith(";") or t.startswith("."): self.L.append(t); continue
            c = Ins(t)
            pad = 0
            for (p, age) in self.hist:
                pad = max(pad, need(p, c) - age)
            if pad > 0:
                self.L.append(f"s_nop {pad-1}"); self.nnops += 1
                self.hist = [(p, a + pad) for (p, a) in self.hist]
            self.L.append(t)
            self.hist = [(p, a + c.states) for (p, a) in self.hist if a + c.states < 12] + [(c, 0)]
            if c.mn.startswith("s_cbranch") or c.mn == "s_branch":
                tgt = t.split()[1]
                self.snap.setdefault(tgt, []).append(list(self.hist))
                if c.mn == "s_branch": self.hist = []
            if c.mn == "s_endpgm": self.hist = []
    def text(self): return "\n".join(self.L) + "\n"
```

```python
import sys, json
from asmlib import Asm
KN = "adaLN_cond__gqa_block_cached__glu_gated_bilinear__decode"
HEADER = open("cdna_kernels/" + KN + ".s.ref").read().split("; Override launch")[0]

EP    = 0x0
R_RDY = 0x1000
R_MOD = 0x10000
R_ML  = 0x30000
R_Q   = 0x40000
R_O   = 0x80000
R_Y   = 0xA0000
R_X2  = 0xB0000
R_GU  = 0xB8000
R_OP  = 0xD0000
STAMP = 0x8000000
OOB   = 0x40000000
L_CMOD, L_CQP, L_CQ, L_ML, L_M, L_IL, L_LOC, L_CV = 0, 4, 8, 12, 16, 20, 24, 28
L_MOD, L_QP, L_Q, L_O, L_Y, L_GU, L_D = 256, 512, 1024, 1536, 2048, 2304, 2560
LOG2E = "0x3fb8aa3b"
SCALE = "0x3db504f3"
EPS   = "0x3727c5ac"
GOLD  = "0x9e3779b9"
LIMIT = 1 << 16

def gen(path, stamps=False, depth=3, depth_odd=None, p1=20, cv_at=28, gu_late=True, pretouch=True, sleep_mid=4, force_global=False, dbg=False):
    A = Asm()
    uid = [0]
    def lab(p):
        uid[0] += 1; return f"L_{p}{uid[0]}"
    nst = {"h": 0, "s": 0}
    def stamp(k):
        if stamps: A(f"s_memrealtime s[{48+2*k}:{49+2*k}]")
    def srd(d, p, size):
        A(f"s_mov_b32 s{d}, s{p}\ns_mov_b32 s{d+1}, s{p+1}\ns_mov_b32 s{d+2}, {hex(size)}\ns_mov_b32 s{d+3}, 0x20000")
    def execm(lo, hi):
        A(f"s_mov_b32 exec_lo, {hex(lo)}\ns_mov_b32 exec_hi, {hex(hi)}")
    def exec_all(): A("s_mov_b64 exec, -1")
    DP = "row_mask:0xf bank_mask:0xf"
    def rb2(a, b, t):
        A(f"v_cvt_pk_bf16_f32 v{t}, v{a}, v{b}\nv_lshlrev_b32 v{a}, 16, v{t}\nv_and_b32 v{b}, s11, v{t}")
    def rb1(a):
        A(f"v_cvt_pk_bf16_f32 v{a}, v{a}, v{a}\nv_lshlrev_b32 v{a}, 16, v{a}")
    def masks(lane, m0, t0, t1):
        A(f"v_and_b32 v{t0}, 1, v{lane}\nv_lshlrev_b32 v{t0}, 4, v{t0}\nv_mov_b32 v{t1}, 0xffff\nv_lshlrev_b32 v{t0}, v{t0}, v{t1}")
        A(f"v_bfe_u32 v{t1}, v{lane}, 1, 2")
        for r in range(4):
            A(f"v_cmp_eq_u32 vcc, {r}, v{t1}\nv_cndmask_b32 v{m0+r}, 0, v{t0}, vcc")
    def lds_wait(off, n, vz, vt, sleep=1):
        l = lab("lw"); d = lab("lwd")
        A(f"s_mov_b32 s10, {LIMIT*16}")
        A(f"{l}:\nds_read_b32 v{vt}, v{vz} offset:{off}\ns_waitcnt lgkmcnt(0)\nv_readfirstlane_b32 s9, v{vt}\ns_cmp_ge_u32 s9, {n}\ns_cbranch_scc1 {d}")
        if sleep: A(f"s_sleep {sleep}")
        A(f"s_sub_u32 s10, s10, 1\ns_cbranch_scc0 {l}\n{d}:")
    def poll(loads, check, sleep=0):
        l = lab("pl"); d = lab("pd")
        A(f"s_mov_b32 s10, {LIMIT}")
        A(f"{l}:")
        for x in loads: A(x)
        A("s_waitcnt vmcnt(0)")
        check()
        A(f"s_cbranch_scc0 {d}")
        if sleep: A(f"s_sleep {sleep}")
        A(f"s_sub_u32 s10, s10, 1\ns_cbranch_scc0 {l}\n{d}:")
    def chk_tags(rs):
        def f():
            A(f"v_cmp_ne_u32 vcc, s8, v{rs[0]}")
            for r in rs[1:]:
                A(f"v_cmp_ne_u32 s[92:93], s8, v{r}\ns_or_b64 vcc, vcc, s[92:93]")
            A("s_cmp_lg_u64 vcc, 0")
        return f
    def chk_sent(rs, t):
        def f():
            if len(rs) == 2: A(f"v_max_u32 v{t}, v{rs[0]}, v{rs[1]}")
            else:
                A(f"v_max3_u32 v{t}, v{rs[0]}, v{rs[1]}, v{rs[2]}")
                k = 3
                while k + 1 < len(rs):
                    A(f"v_max3_u32 v{t}, v{t}, v{rs[k]}, v{rs[k+1]}"); k += 2
                if k < len(rs): A(f"v_max_u32 v{t}, v{t}, v{rs[k]}")
            A(f"v_cmp_eq_u32 vcc, -1, v{t}\ns_cmp_lg_u64 vcc, 0")
        return f
    def allred1(v, t, op):
        for k in (8, 4, 2, 1): A(f"{op}_dpp v{v}, v{v}, v{v} row_ror:{k} {DP}")
        A(f"v_mov_b32 v{t}, v{v}\nv_permlane16_swap_b32 v{v}, v{t}\n{op} v{v}, v{v}, v{t}")
        A(f"v_mov_b32 v{t}, v{v}\nv_permlane32_swap_b32 v{v}, v{t}\n{op} v{v}, v{v}, v{t}")
    def ln_stats(a, b, t):
        A(f"v_permlane32_swap_b32 v{a}, v{b}\nv_add_f32 v{a}, v{a}, v{b}")
        A(f"v_mov_b32 v{t}, v{a}\nv_permlane16_swap_b32 v{a}, v{t}\nv_add_f32 v{a}, v{a}, v{t}")
        for k in (8, 4, 2, 1): A(f"v_add_f32_dpp v{a}, v{a}, v{a} row_ror:{k} {DP}")
        A(f"v_mul_f32 v{a}, 0x3b000000, v{a}")
        A(f"v_mov_b32 v{b}, v{a}\nv_permlane32_swap_b32 v{a}, v{b}")
        A(f"v_fma_f32 v{b}, -v{a}, v{a}, v{b}\nv_max_f32 v{b}, 0, v{b}")
        rb2(a, b, t)
        A(f"v_add_f32 v{b}, {EPS}, v{b}"); rb1(b)
        A(f"v_sqrt_f32 v{b}, v{b}"); rb1(b)
        A(f"v_rcp_f32 v{b}, v{b}")
    def store_lg(ins):
        g = lab("sg"); d = lab("sd")
        if force_global: A(ins + " sc1"); return
        A(f"s_cmp_eq_u32 s94, 2\ns_cbranch_scc0 {g}\n{ins}\ns_branch {d}\n{g}:\n{ins} sc1\n{d}:")
    def write_stamps(slot):
        if not stamps: return
        A("s_waitcnt lgkmcnt(0)")
        A(f"s_lshl_b32 s9, s2, 7\ns_add_u32 s9, s9, {STAMP + 64*slot}\nv_mov_b32 v100, 0\ns_mov_b64 exec, 1")
        for j in range(4):
            b = 48 + 4*j
            A(f"v_mov_b32 v104, s{b}\nv_mov_b32 v105, s{b+1}\nv_mov_b32 v106, s{b+2}\nv_mov_b32 v107, s{b+3}")
            A(f"buffer_store_dwordx4 v[104:107], v100, s[20:23], s9 offen offset:{16*j}")
        exec_all()

    A.raw(HEADER + "; @launch grid=(256,1,1) block=(768,1,1) lds=4096")
    A.raw('.amdgcn_target "amdgcn-amd-amdhsa--gfx950"\n.text')
    A.raw(f".globl {KN}_kernel\n.p2align 8\n.type {KN}_kernel,@function\n{KN}_kernel:")
    A("s_cmp_ge_u32 s2, 256\ns_cbranch_scc1 L_done")
    if stamps:
        for k in range(1, 8): A(f"s_mov_b64 s[{48+2*k}:{49+2*k}], 0")
    stamp(0)
    A("s_load_dwordx16 s[64:79], s[0:1], 0\ns_load_dwordx8 s[80:87], s[0:1], 64\ns_load_dwordx4 s[88:91], s[0:1], 96")
    A("v_lshrrev_b32 v2, 6, v0\nv_and_b32 v1, 63, v0\nv_readfirstlane_b32 s3, v2")
    A("s_and_b32 s4, s2, 7\ns_lshr_b32 s5, s2, 3\ns_lshl_b32 s6, s4, 2\ns_and_b32 s7, s5, 3\ns_add_u32 s6, s6, s7\ns_lshr_b32 s7, s5, 2")
    A("s_mov_b32 s11, 0xffff0000\nv_lshlrev_b32 v11, 4, v1")
    A("s_cmp_lt_u32 s3, 4\ns_cbranch_scc1 L_helper")

    A("s_lshl_b32 s24, s6, 20\ns_lshl_b32 s25, s7, 17\ns_add_u32 s24, s24, s25\ns_sub_u32 s26, s3, 4\ns_lshl_b32 s25, s26, 14\ns_add_u32 s24, s24, s25")
    A("s_add_u32 s25, s24, 4096\ns_add_u32 s27, s24, 8192\ns_add_u32 s28, s24, 12288")
    soff = ["s24", "s25", "s27", "s28"]
    A("v_mov_b32 v6, v11")
    A("s_waitcnt lgkmcnt(0)")
    srd(12, 66, 0x2000000); srd(16, 68, 0x2000000)
    KB, VB = 32, 96
    q = []
    def issue(n):
        t = n % 16
        r = (KB if n < 16 else VB) + 4*t
        A(f"buffer_load_dwordx4 v[{r}:{r+3}], v6, {'s[12:15]' if n < 16 else 's[16:19]'}, {soff[t//4]} offen offset:{(t%4)*1024} nt")
        q.append(n)
    def wait_for(tag):
        k = len(q) - 1 - q.index(tag)
        A(f"s_waitcnt vmcnt({k})")
    def throttle(n):
        if depth_odd is not None and depth_odd != depth:
            lo, hi = min(depth, depth_odd), max(depth, depth_odd)
            if n - hi >= 0: wait_for(n - hi)
            if n - lo >= 0:
                sk = lab("th")
                A(f"s_cbranch_vccnz {sk}"); wait_for(n - lo); A(f"{sk}:")
        elif n - depth >= 0: wait_for(n - depth)
    d0 = min(depth, depth_odd or depth)
    for n in range(d0): issue(n)
    srd(20, 90, 0x10000000)
    A("s_load_dword s8, s[90:91], 0")
    masks(1, 28, 2, 3)
    A("v_mov_b32 v0, 0")
    A("s_mov_b32 s30, 0xaaaaaaaa\ns_mov_b32 s31, 0xaaaaaaaa\ns_mov_b32 s32, 0xcccccccc\ns_mov_b32 s33, 0xcccccccc")
    A("v_and_b32 v3, 15, v1\nv_lshlrev_b32 v3, 4, v3")
    A("v_lshrrev_b32 v4, 4, v1\nv_lshlrev_b32 v4, 4, v4\nv_lshl_add_u32 v4, v3, 1, v4")
    A("s_barrier")
    def set_deep():
        if depth_odd is not None and depth_odd != depth:
            A("s_and_b32 s34, s4, 1")
            if depth_odd < depth: A("s_xor_b32 s34, s34, 1")
            A("s_mov_b32 s35, 0\ns_mov_b64 vcc, s[34:35]")
    set_deep()
    for n in range(d0, p1 + 1):
        throttle(n); issue(n)
    stamp(1)
    lds_wait(L_CQ, 4, 0, 2)
    A(f"ds_read_b128 v[24:27], v3 offset:{L_Q}")
    A(f"s_add_u32 s8, s8, {GOLD}")
    wait_for(15)
    A("s_waitcnt lgkmcnt(0)")
    stamp(2)
    seg = []
    for k in range(4):
        for t in range(16):
            if k == 0: seg.append(f"v_dot2_f32_bf16 v{8+t}, v{KB+4*t}, v24, 0")
            else: seg.append(f"v_dot2c_f32_bf16 v{8+t}, v{KB+4*t+k}, v{24+k}")
        seg.append("LOAD")
    for t in range(8): seg.append(f"v_add_f32_dpp v{8+t}, v{8+t}, v{8+t} row_ror:8 row_mask:0xf bank_mask:0x3")
    for t in range(8): seg.append(f"v_add_f32_dpp v{8+t}, v{16+t}, v{16+t} row_ror:8 row_mask:0xf bank_mask:0xc")
    for t in range(4): seg.append(f"v_add_f32_dpp v{8+t}, v{8+t}, v{8+t} row_shl:4 row_mask:0xf bank_mask:0x5")
    for t in range(4): seg.append(f"v_add_f32_dpp v{8+t}, v{12+t}, v{12+t} row_shr:4 row_mask:0xf bank_mask:0xa")
    for t in range(4): seg.append(f"v_add_f32_dpp v{8+t}, v{8+t}, v{8+t} quad_perm:[1,0,3,2] {DP}")
    for t in range(4): seg.append(f"v_add_f32_dpp v{8+t}, v{8+t}, v{8+t} quad_perm:[2,3,0,1] {DP}")
    nxt = p1 + 1
    nload = 0
    for s in seg:
        if s == "LOAD":
            nload += 1
            if nload in (2, 4) and nxt < 32:
                throttle(nxt); issue(nxt); nxt += 1
        else: A(s)
    A("v_cndmask_b32 v8, v8, v9, s[30:31]\nv_cndmask_b32 v10, v10, v11, s[30:31]\nv_cndmask_b32 v5, v8, v10, s[32:33]")
    rb1(5); A(f"v_mul_f32 v5, {SCALE}, v5"); rb1(5)
    A("v_mov_b32 v8, v5"); allred1(8, 9, "v_max_f32")
    A(f"v_sub_f32 v10, v5, v8\nv_mul_f32 v10, {LOG2E}, v10\nv_exp_f32 v10, v10")
    allred1(10, 9, "v_add_f32")
    A("v_mov_b32 v9, s8\nv_mov_b32 v12, v8\nv_mov_b32 v13, s8\nv_mov_b32 v14, v10\nv_mov_b32 v15, s8")
    A(f"s_lshl_b32 s9, s6, 10\ns_lshl_b32 s10, s7, 7\ns_add_u32 s9, s9, s10\ns_lshl_b32 s10, s26, 4\ns_add_u32 s9, s9, s10\ns_add_u32 s9, s9, {R_ML}")
    A("s_mov_b64 exec, 1\nbuffer_store_dwordx4 v[12:15], v0, s[20:23], s9 offen sc1"); q.append("ml")
    exec_all()
    stamp(3)
    set_deep()
    cv_done = False
    def sig_cv():
        A("v_mov_b32 v9, 1\ns_mov_b64 exec, 1" + f"\nds_add_u32 v0, v9 offset:{L_CV}"); exec_all()
    while nxt < 32:
        throttle(nxt); issue(nxt)
        if nxt >= cv_at and not cv_done: sig_cv(); cv_done = True
        nxt += 1
    if not cv_done: sig_cv()
    stamp(4)
    lds_wait(L_ML, 1, 0, 2)
    A(f"ds_read_b64 v[8:9], v0 offset:{L_M}\ns_waitcnt lgkmcnt(0)")
    stamp(5)
    A(f"v_sub_f32 v5, v5, v8\nv_mul_f32 v5, {LOG2E}, v5\nv_exp_f32 v5, v5\nv_mul_f32 v5, v5, v9\nv_cvt_pk_bf16_f32 v5, v5, v5")
    for t in range(16):
        for r in range(4): A(f"v_and_b32_dpp v{KB+4*t+r}, v5, v{28+r} row_newbcast:{t} {DP}")
    for t in range(16):
        if 16 + t > 31 - max(depth, depth_odd or depth): wait_for(16 + t)
        A(f"v_mfma_f32_16x16x32_bf16 v[12:15], v[{KB+4*t}:{KB+4*t+3}], v[{VB+4*t}:{VB+4*t+3}], {'0' if t == 0 else 'v[12:15]'}")
    stamp(6)
    execm(0xffffffff, 0)
    for r in range(4): A(f"ds_add_f32 v4, v{12+r} offset:{L_O + 4*r}")
    A("s_waitcnt lgkmcnt(0)\ns_barrier")
    A("s_cmp_lg_u32 s3, 4\ns_cbranch_scc1 L_done")
    A(f"ds_read_b128 v[12:15], v6 offset:{L_O}\nds_read_b32 v10, v0 offset:{L_LOC}")
    A(f"s_lshl_b32 s9, s6, 12\ns_lshl_b32 s10, s7, 9\ns_add_u32 s9, s9, s10\ns_add_u32 s9, s9, {R_O}")
    A("s_waitcnt lgkmcnt(0)\nv_readfirstlane_b32 s94, v10")
    store_lg("buffer_store_dwordx4 v[12:15], v6, s[20:23], s9 offen")
    exec_all()
    stamp(7)
    write_stamps(1)
    A("s_endpgm")

    A("L_helper:")
    A("s_setprio 2")
    A("v_mov_b32 v12, 0\nv_mov_b32 v13, 0\nv_mov_b32 v14, 0\nv_mov_b32 v15, 0\nv_lshlrev_b32 v2, 4, v0")
    A("ds_write_b128 v2, v[12:15]")
    A("v_lshrrev_b32 v2, 3, v1\nv_and_b32 v3, 7, v1\nv_lshlrev_b32 v3, 4, v3")
    A("s_lshl_b32 s95, s5, 2\ns_lshr_b32 s9, s4, 1\ns_add_u32 s95, s95, s9\ns_and_b32 s9, s4, 1\ns_lshl_b32 s9, s9, 7\ns_add_u32 s95, s95, s9")
    A("s_and_b32 s96, s95, 3\ns_lshl_b32 s96, s96, 2\ns_add_u32 s96, s96, s3")
    A("v_mul_u32_u24 v100, 24576, v2\nv_add_u32 v100, v100, v3")
    A("v_lshlrev_b32 v101, 3, v2")
    A("v_lshrrev_b32 v102, 4, v1\nv_and_b32 v103, 15, v1")
    A("v_lshlrev_b32 v104, 15, v102\nv_lshl_add_u32 v104, v103, 4, v104")
    A("v_and_b32 v105, 2, v1\nv_lshlrev_b32 v105, 1, v105\nv_lshl_add_u32 v105, v102, 3, v105")
    A("s_lshl_b32 s97, s7, 2\ns_add_u32 s97, s97, s3")
    A("s_waitcnt lgkmcnt(0)")
    srd(12, 84, 512*6144); srd(40, 82, 1024); srd(16, 70, 512*8192); srd(36, 64, 1024); srd(20, 90, 0x10000000)
    A("s_load_dword s8, s[90:91], 0")
    A("s_cmp_ge_u32 s95, 192\ns_cbranch_scc1 L_nomodld")
    A("s_lshl_b32 s9, s96, 6\nbuffer_load_dwordx2 v[84:85], v101, s[40:43], s9 offen")
    A(f"s_mul_i32 s9, s96, {32*6144}\ns_lshr_b32 s10, s95, 2\ns_lshl_b32 s10, s10, 7\ns_add_u32 s9, s9, s10")
    for t in range(4):
        A(f"buffer_load_dwordx4 v[{32+4*t}:{35+4*t}], v100, s[12:15], s9 offen nt")
        if t < 3: A("s_add_u32 s9, s9, 6144")
    A("L_nomodld:")
    A("buffer_load_dwordx4 v[88:91], v11, s[36:39], 0 offen")
    A("s_lshl_b32 s9, s97, 5\nbuffer_load_dword v92, v105, s[36:39], s9 offen")
    A("s_lshl_b32 s9, s97, 17\ns_lshl_b32 s10, s6, 8\ns_add_u32 s9, s9, s10")
    for t in range(4):
        A(f"buffer_load_dwordx4 v[{48+4*t}:{51+4*t}], v104, s[16:19], s9 offen nt")
        if t < 3: A("s_add_u32 s9, s9, 8192")
    A("s_getpc_b64 s[92:93]\nL_pc:")
    A(f"s_sub_u32 s92, s92, L_pc-{KN}_kernel\ns_subb_u32 s93, s93, 0")
    A(f"v_lshlrev_b32 v106, 6, v0\nv_min_u32 v106, L_done-{KN}_kernel, v106\nglobal_load_dword v107, v106, s[92:93]")
    A("v_mov_b32 v0, 0\ns_barrier")
    A(f"s_lshl_b32 s98, s6, 11\ns_lshl_b32 s9, s7, 8\ns_add_u32 s98, s98, s9")
    A("s_and_b32 s99, s5, 3\ns_lshl_b32 s99, s99, 3\ns_add_u32 s99, s99, s4")
    A("s_cmp_lg_u32 s3, 3\ns_cbranch_scc1 L_norst")
    A("v_mov_b32 v16, -1\nv_mov_b32 v17, -1\nv_mov_b32 v18, -1\nv_mov_b32 v19, -1")
    execm(0xffffffff, 0)
    A(f"s_lshl_b32 s9, s98, 1\ns_add_u32 s9, s9, {R_O}\nbuffer_store_dwordx4 v[16:19], v11, s[20:23], s9 offen sc1")
    execm(0xffff, 0)
    A(f"s_add_u32 s9, s98, {R_Y}\nbuffer_store_dwordx4 v[16:19], v11, s[20:23], s9 offen sc1")
    A(f"s_add_u32 s9, s98, {R_GU}\nbuffer_store_dwordx4 v[16:19], v11, s[20:23], s9 offen sc1")
    A(f"s_lshl_b32 s9, s99, 11\ns_lshl_b32 s10, s7, 8\ns_add_u32 s9, s9, s10\ns_add_u32 s9, s9, {R_OP}\nbuffer_store_dwordx4 v[16:19], v11, s[20:23], s9 offen sc1")
    execm(0xf, 0)
    A(f"s_lshl_b32 s9, s4, 11\ns_lshl_b32 s10, s5, 6\ns_add_u32 s9, s9, s10\ns_add_u32 s9, s9, {R_X2}\nbuffer_store_dwordx4 v[16:19], v11, s[20:23], s9 offen sc1")
    exec_all()
    A("L_norst:")
    masks(1, 4, 8, 9)
    A("v_mov_b32 v8, 1.0")
    A("v_and_b32 v9, 16, v1\nv_lshl_add_u32 v9, v3, 1, v9")
    A("v_lshlrev_b32 v10, 4, v102\nv_lshl_add_u32 v10, v103, 5, v10")
    A("s_waitcnt lgkmcnt(0)")
    A(f"s_add_u32 s8, s8, {GOLD}")
    def tile128(src_dup, nt, breg, lds_off):
        for t in range(nt):
            for r in range(4): A(f"v_and_b32 v{16+4*t+r}, v{src_dup[t]}, v{4+r}")
        for t in range(nt):
            A(f"v_mfma_f32_16x16x32_bf16 v[12:15], v[{16+4*t}:{19+4*t}], v[{breg+4*t}:{breg+4*t+3}], {'0' if t == 0 else 'v[12:15]'}")
        execm(0x00ff00ff, 0xff00ff00)
        for r in range(4): A(f"ds_add_f32 v9, v{12+r} offset:{lds_off + 4*r}")
        exec_all()
    def sig(off):
        A(f"v_mov_b32 v108, 1\ns_mov_b64 exec, 1\nds_add_u32 v0, v108 offset:{off}"); exec_all()
    A("s_cmp_ge_u32 s95, 192\ns_cbranch_scc1 L_nomod")
    A("s_waitcnt vmcnt(11)")
    A("v_lshlrev_b32 v108, 16, v84\nv_and_b32 v109, s11, v84\nv_lshlrev_b32 v110, 16, v85\nv_and_b32 v111, s11, v85")
    for k in range(4): A(f"v_mul_f32 v{112+k}, 0xbfb8aa3b, v{108+k}")
    for k in range(4): A(f"v_exp_f32 v{112+k}, v{112+k}")
    for k in range(4): A(f"v_add_f32 v{112+k}, 1.0, v{112+k}")
    for k in range(4): A(f"v_rcp_f32 v{112+k}, v{112+k}")
    for k in range(4): A(f"v_mul_f32 v{112+k}, v{108+k}, v{112+k}")
    for k in range(4): A(f"v_cvt_pk_bf16_f32 v{112+k}, v{112+k}, v{112+k}")
    A("s_waitcnt vmcnt(7)")
    tile128([112, 113, 114, 115], 4, 32, L_MOD)
    sig(L_CMOD)
    A("s_cmp_lg_u32 s3, 0\ns_cbranch_scc1 L_nomod")
    lds_wait(L_CMOD, 4, 0, 108, sleep=0)
    A(f"v_lshlrev_b32 v108, 3, v1\nds_read_b64 v[110:111], v108 offset:{L_MOD}\nv_mov_b32 v113, s8\nv_mov_b32 v115, s8")
    A(f"s_lshl_b32 s9, s95, 9\ns_add_u32 s9, s9, {R_MOD}\ns_waitcnt lgkmcnt(0)\nv_mov_b32 v112, v110\nv_mov_b32 v114, v111")
    execm(0xffffffff, 0)
    A("buffer_store_dwordx4 v[112:115], v11, s[20:23], s9 offen sc1")
    exec_all()
    A("L_nomod:")
    stamp(1)
    A("s_waitcnt vmcnt(0)")
    A("s_cmp_lg_u32 s3, 3\ns_cbranch_scc1 L_nordy")
    A("s_getreg_b32 s100, hwreg(HW_REG_XCC_ID, 0, 4)")
    A(f"v_mov_b32 v108, s100\nv_mov_b32 v109, s8\ns_lshl_b32 s9, s4, 8\ns_lshl_b32 s10, s5, 3\ns_add_u32 s9, s9, s10\ns_add_u32 s9, s9, {R_RDY}")
    A("s_mov_b64 exec, 1\nbuffer_store_dwordx2 v[108:109], v0, s[20:23], s9 offen sc1"); exec_all()
    A("L_nordy:")
    A("v_mov_b32 v110, 0x3f803f80")
    A("v_dot2_f32_bf16 v108, v88, v110, 0\nv_dot2_f32_bf16 v109, v88, v88, 0")
    for k in range(1, 4): A(f"v_dot2_f32_bf16 v108, v{88+k}, v110, v108\nv_dot2_f32_bf16 v109, v{88+k}, v{88+k}, v109")
    ln_stats(108, 109, 110)
    A("v_lshlrev_b32 v112, 16, v92\nv_and_b32 v113, s11, v92\nv_sub_f32 v112, v112, v108\nv_sub_f32 v113, v113, v108")
    rb2(112, 113, 110)
    A("v_mul_f32 v112, v112, v109\nv_mul_f32 v113, v113, v109")
    rb2(112, 113, 110)
    A("v_and_b32 v100, 1, v1\nv_lshlrev_b32 v100, 14, v100\nv_lshrrev_b32 v101, 2, v103\nv_lshl_add_u32 v100, v101, 9, v100\nv_lshl_add_u32 v100, v105, 2, v100")
    A(f"s_lshl_b32 s101, s7, 11\ns_lshl_b32 s9, s3, 7\ns_add_u32 s101, s101, s9\ns_add_u32 s101, s101, {R_MOD}")
    poll(["buffer_load_dwordx4 v[84:87], v100, s[20:23], s101 offen sc1"], chk_tags([85, 87]), sleep_mid)
    stamp(2)
    for k in (4, 8):
        A(f"v_add_f32_dpp v84, v84, v84 row_ror:{k} {DP}\nv_add_f32_dpp v86, v86, v86 row_ror:{k} {DP}")
    rb2(84, 86, 110)
    A(f"v_add_f32_dpp v114, v84, v8 quad_perm:[1,1,3,3] {DP}\nv_add_f32_dpp v115, v86, v8 quad_perm:[1,1,3,3] {DP}")
    rb2(114, 115, 110)
    A("v_mul_f32 v112, v112, v114\nv_mul_f32 v113, v113, v115")
    rb2(112, 113, 110)
    A(f"v_add_f32_dpp v112, v84, v112 quad_perm:[0,0,2,2] {DP}\nv_add_f32_dpp v113, v86, v113 quad_perm:[0,0,2,2] {DP}")
    A("v_cvt_pk_bf16_f32 v112, v112, v112\nv_cvt_pk_bf16_f32 v113, v113, v113")
    for t in range(4):
        z = 2*(t >> 1)
        for r in range(4): A(f"v_and_b32_dpp v{16+4*t+r}, v{112+(t&1)}, v{4+r} quad_perm:[{z},{z},{z},{z}] {DP}")
    for t in range(4):
        A(f"v_mfma_f32_16x16x32_bf16 v[12:15], v[{16+4*t}:{19+4*t}], v[{48+4*t}:{51+4*t}], {'0' if t == 0 else 'v[12:15]'}")
    execm(0xffffffff, 0)
    for r in range(4): A(f"ds_add_f32 v10, v{12+r} offset:{L_QP + 4*r}")
    exec_all()
    sig(L_CQP)
    A("s_cmp_lg_u32 s3, 1\ns_cbranch_scc1 L_noqp")
    lds_wait(L_CQP, 4, 0, 108, sleep=0)
    A(f"v_lshlrev_b32 v108, 3, v1\nds_read_b64 v[110:111], v108 offset:{L_QP}\nv_mov_b32 v113, s8\nv_mov_b32 v115, s8")
    A(f"s_lshl_b32 s9, s98, 2\ns_add_u32 s9, s9, {R_Q}\ns_waitcnt lgkmcnt(0)\nv_mov_b32 v112, v110\nv_mov_b32 v114, v111")
    A("buffer_store_dwordx4 v[112:115], v11, s[20:23], s9 offen sc1")
    A("L_noqp:")
    A("v_lshlrev_b32 v100, 11, v102\nv_lshl_add_u32 v100, v103, 4, v100")
    A(f"s_lshl_b32 s101, s6, 13\ns_lshl_b32 s9, s3, 8\ns_add_u32 s101, s101, s9\ns_add_u32 s101, s101, {R_Q}")
    A("v_lshrrev_b32 v101, 5, v1\nv_lshlrev_b32 v101, 1, v101\nv_lshl_add_u32 v101, v103, 2, v101\ns_lshl_b32 s9, s3, 6\nv_add_u32 v101, s9, v101")
    poll(["buffer_load_dwordx4 v[84:87], v100, s[20:23], s101 offen sc1", "buffer_load_dwordx4 v[88:91], v100, s[20:23], s101 offen offset:1024 sc1"], chk_tags([85, 87, 89, 91]), sleep_mid)
    A("v_add_f32 v84, v84, v88\nv_add_f32 v86, v86, v90\nv_permlane32_swap_b32 v84, v86\nv_add_f32 v84, v84, v86")
    A("v_mov_b32 v86, v84\nv_permlane16_swap_b32 v84, v86\nv_add_f32 v84, v84, v86\nv_cvt_pk_bf16_f32 v84, v84, v84")
    A(f"ds_write_b16 v101, v84 offset:{L_Q}")
    sig(L_CQ)
    stamp(3)
    srd(24, 72, 4096*1024); srd(32, 80, 1376*1024); srd(44, 86, 1024)
    A("s_cmp_ge_u32 s7, 4\ns_cselect_b32 s28, s78, s76\ns_cselect_b32 s29, s79, s77" + f"\ns_mov_b32 s30, {512*2752}\ns_mov_b32 s31, 0x20000")
    A("s_and_b32 s96, s7, 3\ns_lshl_b32 s96, s96, 2\ns_add_u32 s96, s96, s3")
    A("v_and_b32 v100, 4, v1\nv_lshlrev_b32 v100, 12, v100\nv_and_b32 v101, 3, v1\nv_lshl_add_u32 v100, v101, 9, v100\nv_lshl_add_u32 v100, v2, 5, v100")
    A(f"s_lshr_b32 s101, s96, 1\ns_lshl_b32 s101, s101, 11\ns_and_b32 s9, s3, 1\ns_lshl_b32 s9, s9, 8\ns_add_u32 s101, s101, s9\ns_add_u32 s101, s101, {R_MOD + 24*2048}")
    poll(["buffer_load_dwordx4 v[84:87], v100, s[20:23], s101 offen sc1", "buffer_load_dwordx4 v[88:91], v100, s[20:23], s101 offen offset:16 sc1"], chk_tags([85, 87, 89, 91]), sleep_mid)
    for qp in ("[1,0,3,2]", "[2,3,0,1]"):
        for r in (84, 86, 88, 90): A(f"v_add_f32_dpp v{r}, v{r}, v{r} quad_perm:{qp} {DP}")
    rb2(84, 86, 110); rb2(88, 90, 110)
    for k, r in enumerate((84, 86, 88, 90)): A(f"v_mov_b32 v{72+k}, v{r}\nv_mov_b32 v{76+k}, v{r}")
    for k, r in enumerate((84, 86, 88, 90)):
        A(f"v_mov_b32_dpp v{72+k}, v{r} row_half_mirror row_mask:0xf bank_mask:0xa\nv_mov_b32_dpp v{76+k}, v{r} row_half_mirror row_mask:0xf bank_mask:0x5")
    for k in range(4): A(f"v_add_f32 v{76+k}, 1.0, v{76+k}")
    rb2(76, 77, 110); rb2(78, 79, 110)
    A("v_lshlrev_b32 v116, 5, v3\nv_lshl_add_u32 v116, v2, 4, v116")
    A("v_lshrrev_b32 v117, 2, v1\nv_lshlrev_b32 v117, 11, v117\nv_and_b32 v101, 3, v1\nv_lshl_add_u32 v117, v101, 4, v117")
    A(f"v_mov_b32 v118, {OOB}\nv_cmp_gt_u32 vcc, 24, v1\nv_cndmask_b32 v118, v118, v117, vcc")
    A("v_lshl_add_u32 v119, v101, 2, v102")
    A("v_lshlrev_b32 v120, 4, v2")
    A("v_lshlrev_b32 v121, 4, v3\nv_lshl_add_u32 v121, v2, 3, v121")
    A("v_lshl_add_u32 v122, v2, 12, v3")
    A("v_mul_u32_u24 v123, 11008, v2\nv_add_u32 v123, v123, v3")
    A(f"s_cmp_eq_u32 s99, 21\ns_cselect_b32 s9, 64, 128\nv_mov_b32 v101, {OOB}\nv_cmp_gt_u32 vcc, s9, v3\nv_cndmask_b32 v123, v101, v123, vcc")
    A("v_lshl_add_u32 v124, v2, 11, v3")
    A("v_lshlrev_b32 v125, 2, v119\nv_lshlrev_b32 v126, 1, v119")
    A("s_cmp_eq_u32 s3, 2\ns_cbranch_scc1 L_w2\ns_cmp_eq_u32 s3, 3\ns_cbranch_scc1 L_w3\ns_cmp_eq_u32 s3, 1\ns_cbranch_scc1 L_mid")
    A("v_bfe_u32 v100, v1, 2, 2\nv_lshlrev_b32 v100, 9, v100\nv_lshl_add_u32 v100, v119, 3, v100")
    A(f"s_lshl_b32 s101, s7, 11\ns_and_b32 s9, s5, 3\ns_lshl_b32 s9, s9, 7\ns_add_u32 s101, s101, s9\ns_add_u32 s101, s101, {R_MOD + 16*2048}\ns_add_u32 s100, s101, {24*2048}")
    A("s_lshl_b32 s9, s5, 5\nbuffer_load_ushort v82, v126, s[36:39], s9 offen")
    poll(["buffer_load_dwordx2 v[84:85], v100, s[20:23], s101 offen sc1", "buffer_load_dwordx2 v[86:87], v100, s[20:23], s100 offen sc1"], chk_tags([85, 87]), sleep_mid)
    for k in (4, 8):
        A(f"v_add_f32_dpp v84, v84, v84 row_ror:{k} {DP}\nv_add_f32_dpp v86, v86, v86 row_ror:{k} {DP}")
    rb2(84, 86, 110)
    A("v_mov_b32 v80, v84\nv_mov_b32 v81, v86\nv_lshlrev_b32 v82, 16, v82")
    A("s_branch L_mid")
    A("L_w3:")
    A(f"s_mov_b32 s101, {R_RDY}\ns_lshl_b32 s9, s4, 8\ns_add_u32 s9, s9, s101\nv_and_b32 v100, 31, v1\nv_lshlrev_b32 v100, 3, v100\nv_add_u32 v100, s9, v100")
    poll(["buffer_load_dwordx4 v[84:87], v11, s[20:23], s101 offen sc1", "buffer_load_dwordx4 v[88:91], v11, s[20:23], s101 offen offset:1024 sc1", "buffer_load_dwordx2 v[92:93], v100, s[20:23], 0 offen sc1"], chk_tags([85, 87, 89, 91, 93]), sleep_mid)
    A("v_cmp_ne_u32 vcc, s100, v92\ns_cmp_eq_u64 vcc, 0\ns_cselect_b32 s9, 2, 1\nv_mov_b32 v108, s9")
    A(f"ds_write_b32 v0, v108 offset:{L_LOC}")
    A("s_branch L_mid")
    A("L_w2:")
    A(f"s_lshl_b32 s101, s6, 10\ns_add_u32 s101, s101, {R_ML}")
    poll(["buffer_load_dwordx4 v[84:87], v11, s[20:23], s101 offen sc1"], chk_tags([85, 87]), sleep_mid)
    A("v_mov_b32 v88, v84"); allred1(88, 90, "v_max_f32")
    A(f"v_sub_f32 v84, v84, v88\nv_mul_f32 v84, {LOG2E}, v84\nv_exp_f32 v84, v84\nv_mul_f32 v89, v84, v86")
    allred1(89, 90, "v_add_f32")
    A("v_rcp_f32 v89, v89")
    A(f"ds_write_b64 v0, v[88:89] offset:{L_M}")
    sig(L_ML)
    A("L_mid:")
    stamp(4)
    lds_wait(L_LOC, 1, 0, 108, sleep=2)
    A("s_mov_b32 s94, s9")
    A(f"s_lshl_b32 s12, s6, 12\ns_lshl_b32 s9, s3, 7\ns_add_u32 s12, s12, s9\ns_add_u32 s12, s12, {R_O}")
    A(f"s_lshl_b32 s13, s5, 6\ns_add_u32 s14, s13, {R_Y + 16*2048}\ns_add_u32 s16, s13, {R_OP}\ns_add_u32 s17, s13, {R_OP + 16*2048}\ns_add_u32 s13, s13, {R_Y}")
    A(f"s_lshl_b32 s15, s4, 11\ns_add_u32 s15, s15, {R_X2}")
    A("s_lshl_b32 s18, s96, 7\ns_add_u32 s18, s18, s15")
    A(f"s_lshl_b32 s19, s6, 11\ns_lshl_b32 s9, s3, 6\ns_add_u32 s19, s19, s9\ns_add_u32 s19, s19, {R_GU}")
    A("s_lshl_b32 s40, s5, 6\ns_add_u32 s40, s40, s15")
    A(f"s_add_u32 s41, s98, {R_Y}\ns_add_u32 s42, s98, {R_GU}")
    A(f"s_lshl_b32 s43, s99, 11\ns_lshl_b32 s9, s7, 8\ns_add_u32 s43, s43, s9\ns_add_u32 s43, s43, {R_OP}")
    lds_wait(L_CV, 8, 0, 108, sleep=2)
    A("s_lshl_b32 s9, s6, 17\ns_lshl_b32 s10, s3, 15\ns_add_u32 s9, s9, s10\ns_lshl_b32 s10, s7, 7\ns_add_u32 s9, s9, s10")
    for t in range(4): A(f"buffer_load_dwordx4 v[{32+4*t}:{35+4*t}], v122, s[24:27], s9 offen offset:{1024*t} nt")
    def ffn_loads():
        sk = lab("nf")
        A(f"s_cmp_ge_u32 s99, 22\ns_cbranch_scc1 {sk}")
        A(f"s_mul_i32 s9, s96, {32*2752}\ns_lshl_b32 s10, s99, 7\ns_add_u32 s9, s9, s10")
        for t in range(4):
            A(f"buffer_load_dwordx4 v[{48+4*t}:{51+4*t}], v123, s[28:31], s9 offen nt")
            if t < 3: A("s_add_u32 s9, s9, 2752")
        A("s_lshl_b32 s9, s99, 16\ns_lshl_b32 s10, s3, 14\ns_add_u32 s9, s9, s10\ns_lshl_b32 s10, s7, 7\ns_add_u32 s9, s9, s10")
        for t in range(2): A(f"buffer_load_dwordx4 v[{64+4*t}:{67+4*t}], v124, s[32:35], s9 offen offset:{1024*t} nt")
        A(f"{sk}:")
    if not gu_late: ffn_loads()
    if pretouch:
        A("buffer_load_dwordx4 v[84:87], v116, s[20:23], s12 offen sc1")
        A("buffer_load_dwordx2 v[88:89], v121, s[20:23], s19 offen sc1")
        A("s_cmp_lg_u32 s3, 0\ns_cbranch_scc1 L_pt1")
        A("buffer_load_dwordx4 v[92:95], v117, s[20:23], s13 offen sc1\nbuffer_load_dwordx4 v[96:99], v117, s[20:23], s14 offen sc1")
        A("s_branch L_pt2\nL_pt1:")
        A("s_cmp_lg_u32 s3, 1\ns_cbranch_scc1 L_pt2")
        A("buffer_load_dwordx4 v[92:95], v11, s[20:23], s15 offen sc1\nbuffer_load_dwordx4 v[96:99], v11, s[20:23], s15 offen offset:1024 sc1")
        A("L_pt2:")
    stamp(5)
    A("s_barrier")
    poll(["buffer_load_dwordx4 v[84:87], v116, s[20:23], s12 offen sc1"], chk_sent([84, 85, 86, 87], 108))
    if gu_late: ffn_loads()
    if stamps == 2: stamp(1)
    for c in ("quad_perm:[1,0,3,2]", "quad_perm:[2,3,0,1]", "row_half_mirror"):
        for r in range(84, 88): A(f"v_add_f32_dpp v{r}, v{r}, v{r} {c} {DP}")
    for r in range(84, 88): A(f"v_cvt_pk_bf16_f32 v{r}, v{r}, v{r}")
    tile128([84, 85, 86, 87], 4, 32, L_Y)
    A("s_waitcnt lgkmcnt(0)\ns_barrier")
    def publish64(lds_off, soffs, local):
        sk = lab("pb")
        A(f"s_cmp_lg_u32 s3, 1\ns_cbranch_scc1 {sk}")
        execm(0xffff, 0)
        A(f"ds_read_b128 v[84:87], v11 offset:{lds_off}\ns_waitcnt lgkmcnt(0)")
        ins = f"buffer_store_dwordx4 v[84:87], v11, s[20:23], {soffs} offen"
        if local: store_lg(ins)
        else: A(ins + " sc1")
        exec_all()
        A(f"{sk}:")
    publish64(L_Y, "s41", False)
    def gather16(s_lo, s_hi, v_hi):
        poll([f"buffer_load_dwordx4 v[84:87], v117, s[20:23], {s_lo} offen sc1", f"buffer_load_dwordx4 v[88:91], v{v_hi}, s[20:23], {s_hi} offen sc1"], chk_sent(list(range(84, 92)), 108))
        A("v_pk_add_f32 v[84:85], v[84:85], v[88:89]\nv_pk_add_f32 v[86:87], v[86:87], v[90:91]")
        A("v_permlane32_swap_b32 v84, v86\nv_permlane32_swap_b32 v85, v87\nv_add_f32 v84, v84, v86\nv_add_f32 v85, v85, v87")
        A("v_permlane16_swap_b32 v84, v85\nv_add_f32 v84, v84, v85")
        A(f"v_add_f32_dpp v84, v84, v84 row_ror:4 {DP}\nv_add_f32_dpp v84, v84, v84 row_ror:8 {DP}")
        rb1(84)
    A("s_cmp_lg_u32 s3, 0\ns_cbranch_scc1 L_nod1")
    if stamps == 2: stamp(2)
    gather16("s13", "s14", 117)
    if stamps == 2: stamp(3)
    A("v_mul_f32 v84, v80, v84"); rb1(84)
    A("v_add_f32 v83, v82, v84"); rb1(83)
    execm(0x000f000f, 0x000f000f)
    store_lg("buffer_store_dword v83, v125, s[20:23], s40 offen")
    exec_all()
    A("L_nod1:")
    A("s_cmp_ge_u32 s99, 22\ns_cbranch_scc1 L_final")
    poll(["buffer_load_dwordx4 v[84:87], v11, s[20:23], s15 offen sc1", "buffer_load_dwordx4 v[88:91], v11, s[20:23], s15 offen offset:1024 sc1", "buffer_load_dwordx4 v[92:95], v120, s[20:23], s18 offen sc1"], chk_sent(list(range(84, 96)), 108))
    if stamps == 2: stamp(4)
    A("v_pk_add_f32 v[96:97], v[84:85], v[86:87]\nv_pk_mul_f32 v[98:99], v[84:85], v[84:85]")
    A("v_pk_add_f32 v[96:97], v[96:97], v[88:89]\nv_pk_fma_f32 v[98:99], v[86:87], v[86:87], v[98:99]")
    A("v_pk_add_f32 v[96:97], v[96:97], v[90:91]\nv_pk_fma_f32 v[98:99], v[88:89], v[88:89], v[98:99]")
    A("v_add_f32 v108, v96, v97\nv_pk_fma_f32 v[98:99], v[90:91], v[90:91], v[98:99]\nv_add_f32 v109, v98, v99")
    ln_stats(108, 109, 110)
    for k in range(4): A(f"v_sub_f32 v{92+k}, v{92+k}, v108")
    rb2(92, 93, 110); rb2(94, 95, 111)
    for k in range(4): A(f"v_mul_f32 v{92+k}, v{92+k}, v109")
    rb2(92, 93, 110); rb2(94, 95, 111)
    A("v_pk_mul_f32 v[92:93], v[92:93], v[76:77]\nv_pk_mul_f32 v[94:95], v[94:95], v[78:79]")
    rb2(92, 93, 110); rb2(94, 95, 111)
    A("v_pk_add_f32 v[92:93], v[92:93], v[72:73]\nv_pk_add_f32 v[94:95], v[94:95], v[74:75]")
    for k in range(4): A(f"v_cvt_pk_bf16_f32 v{92+k}, v{92+k}, v{92+k}")
    tile128([92, 93, 94, 95], 4, 48, L_GU)
    A("s_waitcnt lgkmcnt(0)\ns_barrier")
    publish64(L_GU, "s42", True)
    if stamps == 2: stamp(5)
    poll(["buffer_load_dwordx2 v[88:89], v121, s[20:23], s19 offen sc1"], chk_sent([88, 89], 108))
    if stamps == 2: stamp(6)
    for qp in ("[1,0,3,2]", "[2,3,0,1]"):
        for r in (88, 89): A(f"v_add_f32_dpp v{r}, v{r}, v{r} quad_perm:{qp} {DP}")
    rb2(88, 89, 110)
    A(f"v_mul_f32_dpp v90, v88, v88 row_half_mirror {DP}\nv_mul_f32_dpp v91, v89, v89 row_half_mirror {DP}")
    A("v_cvt_pk_bf16_f32 v90, v90, v90\nv_cvt_pk_bf16_f32 v91, v91, v91")
    tile128([90, 91], 2, 64, L_D)
    A("s_waitcnt lgkmcnt(0)\ns_barrier")
    publish64(L_D, "s43", False)
    A("L_final:")
    if stamps == 1: stamp(6)
    A("s_cmp_lg_u32 s3, 0\ns_cbranch_scc1 L_done")
    A("s_bfe_u32 s9, s5, 0x30001\ns_cmp_lg_u32 s9, s4\ns_cbranch_scc1 L_fin2")
    gather16("s16", "s17", 118)
    A("v_mul_f32 v84, v81, v84"); rb1(84)
    A("v_add_f32 v84, v83, v84\nv_cvt_pk_bf16_f32 v84, v84, v84\ns_lshl_b32 s9, s5, 5")
    execm(0x000f000f, 0x000f000f)
    A("buffer_store_short v84, v126, s[44:47], s9 offen")
    A("s_cmp_lg_u32 s2, 0\ns_cbranch_scc1 L_noep")
    A("v_mov_b32 v85, s8\ns_mov_b64 exec, 1\nbuffer_store_dword v85, v0, s[20:23], 0 offen sc1")
    A("L_noep:")
    exec_all()
    stamp(7)
    A("L_fin2:")
    write_stamps(0)
    A("L_done:\ns_endpgm")
    A.raw('.section .rodata,"a"\n.p2align 6\n' + f".amdhsa_kernel {KN}_kernel")
    A.raw("  .amdhsa_next_free_vgpr 168\n  .amdhsa_next_free_sgpr 102\n  .amdhsa_accum_offset 168\n  .amdhsa_group_segment_fixed_size 0\n  .amdhsa_kernarg_size 112")
    A.raw("  .amdhsa_user_sgpr_count 2\n  .amdhsa_user_sgpr_kernarg_segment_ptr 1\n  .amdhsa_system_sgpr_workgroup_id_x 1\n  .amdhsa_float_denorm_mode_32 3\n.end_amdhsa_kernel")
    open(path, "w").write(A.text())
    return path

if __name__ == "__main__":
    gen("v1.s"); gen("v1_s1.s", stamps=1); gen("v1_s2.s", stamps=2)
```

```python
import sys, json
from asmlib import Asm
KN = "adaLN_cond__gqa_block_cached__glu_gated_bilinear__decode"
HEADER = open("cdna_kernels/" + KN + ".s.ref").read().split("; Override launch")[0]

EP    = 0x0
R_T   = 0x800
R_RDY = 0x1000
R_MOD = 0x10000
R_ML  = 0x30000
R_Q   = 0x100000
R_O   = 0x80000
R_Y   = 0xA0000
R_X2  = 0xB0000
R_GU  = 0xB8000
R_OP  = 0xD0000
STAMP = 0x8000000
OOB   = 0x40000000
L_CMOD, L_CQP, L_CQ, L_ML, L_M, L_IL, L_LOC, L_CV, L_CML, L_PUB, L_T, L_REC = 0, 4, 8, 12, 16, 20, 24, 28, 32, 36, 40, 64
L_Q, L_MOD, L_QP, L_O, L_Y, L_GU, L_D, L_END = 256, 1024, 3072, 5120, 9216, 11264, 13312, 15360
LOG2E = "0x3fb8aa3b"
SCALE = "0x3db504f3"
EPS   = "0x3727c5ac"
GOLD  = "0x9e3779b9"
LIMIT = 1 << 16

def gen(path, stamps=0, depth=lambda n: 3, depth_odd=None, p1=20, cv_at=28, gu_late=True, pretouch="OGXYF", sleep_mid=4, force_global=False, hprio=2, f_delay=0, stampwave=0, p2_delay=0, sleep_p2=None, prewrite=False, hold=3, nt_delay=10, qsw=24, p1max=31, x_noml=False, x_nomid=False, x_nopoll=False, q_delay=0, ranks=(0,4,1,5,2,15,3,15), adapt=None, d1_delay=0, gu_mode=None, gu_sleep=3, pipe=1, pipe_gap=0, tlb=False, wd_early=False, wsoff=0):
    A = Asm()
    uid = [0]
    def lab(p):
        uid[0] += 1; return f"L_{p}{uid[0]}"
    def stamp(k):
        if stamps and not (stamps == 4 and inh[0] and k > 0): A(f"s_memrealtime s[{48+2*k}:{49+2*k}]")
    inh = [False]; skip_polls = [x_nopoll]
    def stamp4(k):
        if stamps == 4: A(f"s_memrealtime s[{48+2*k}:{49+2*k}]")
    def srd(d, p, size):
        A(f"s_mov_b32 s{d}, s{p}\ns_mov_b32 s{d+1}, s{p+1}\ns_mov_b32 s{d+2}, {hex(size)}\ns_mov_b32 s{d+3}, 0x20000")
    def srd_hi(d, size): A(f"s_mov_b32 s{d+2}, {hex(size)}\ns_mov_b32 s{d+3}, 0x20000")
    def srd_lo(d, p):
        if p == 90 and wsoff: A(f"s_add_u32 s90, s90, {hex(wsoff)}\ns_addc_u32 s91, s91, 0")
        A(f"s_mov_b64 s[{d}:{d+1}], s[{p}:{p+1}]")
    def execm(lo, hi):
        A(f"s_mov_b32 exec_lo, {hex(lo)}\ns_mov_b32 exec_hi, {hex(hi)}")
    def exec_all(): A("s_mov_b64 exec, -1")
    DP = "row_mask:0xf bank_mask:0xf"
    def rb2(a, b, t):
        A(f"v_cvt_pk_bf16_f32 v{t}, v{a}, v{b}\nv_lshlrev_b32 v{a}, 16, v{t}\nv_and_b32 v{b}, s11, v{t}")
    def rb1(a):
        A(f"v_cvt_pk_bf16_f32 v{a}, v{a}, v{a}\nv_lshlrev_b32 v{a}, 16, v{a}")
    def masks(lane, m0, t0, t1):
        A(f"v_and_b32 v{t0}, 1, v{lane}\nv_lshlrev_b32 v{t0}, 4, v{t0}\nv_mov_b32 v{t1}, 0xffff\nv_lshlrev_b32 v{t0}, v{t0}, v{t1}")
        A(f"v_bfe_u32 v{t1}, v{lane}, 1, 2")
        for r in range(4):
            A(f"v_cmp_eq_u32 vcc, {r}, v{t1}\nv_cndmask_b32 v{m0+r}, 0, v{t0}, vcc")
    def lds_wait(off, n, vz, vt, sleep=1):
        l = lab("lw"); d = lab("lwd")
        A(f"s_mov_b32 s10, {LIMIT*16}")
        A(f"{l}:\nds_read_b32 v{vt}, v{vz} offset:{off}\ns_waitcnt lgkmcnt(0)\nv_readfirstlane_b32 s9, v{vt}\ns_cmp_ge_u32 s9, {n}\ns_cbranch_scc1 {d}")
        if sleep: A(f"s_sleep {sleep}")
        A(f"s_sub_u32 s10, s10, 1\ns_cbranch_scc0 {l}\n{d}:")
    def poll(loads, check, sleep=0, diag=None):
        if skip_polls[0]: A("s_waitcnt vmcnt(0)"); return
        l = lab("pl"); d = lab("pd")
        A(f"s_mov_b32 s10, {LIMIT}")
        if diag: stamp(diag[0])
        A(f"{l}:")
        for x in loads: A(x)
        A("s_waitcnt vmcnt(0)")
        if diag:
            sk = lab("dg")
            A(f"s_cmp_lg_u32 s10, {LIMIT}\ns_cbranch_scc1 {sk}"); stamp(diag[1]); A(f"{sk}:")
        check()
        A(f"s_cbranch_vccz {d}")
        if sleep: A(f"s_sleep {sleep}")
        A(f"s_sub_u32 s10, s10, 1\ns_cbranch_scc0 {l}\n{d}:")
        if diag:
            k = diag[2]
            A(f"s_waitcnt lgkmcnt(0)\ns_sub_u32 s9, {LIMIT+1}, s10\ns_mul_i32 s9, s9, 100\ns_add_u32 s{48+2*k}, s48, s9\ns_addc_u32 s{49+2*k}, s49, 0")
    def chk_tags(rs, t):
        def f():
            A(f"v_xor_b32 v{t}, s8, v{rs[0]}")
            for r in rs[1:]:
                A(f"v_xor_b32 v{t+1}, s8, v{r}\nv_or_b32 v{t}, v{t}, v{t+1}")
            A(f"v_cmp_ne_u32 vcc, 0, v{t}")
        return f
    def chk_sent(rs, t):
        def f():
            if len(rs) == 2: A(f"v_max_u32 v{t}, v{rs[0]}, v{rs[1]}")
            else:
                A(f"v_max3_u32 v{t}, v{rs[0]}, v{rs[1]}, v{rs[2]}")
                k = 3
                while k + 1 < len(rs):
                    A(f"v_max3_u32 v{t}, v{t}, v{rs[k]}, v{rs[k+1]}"); k += 2
                if k < len(rs): A(f"v_max_u32 v{t}, v{t}, v{rs[k]}")
            A(f"v_cmp_eq_u32 vcc, -1, v{t}")
        return f
    def allred1(v, t, op):
        for k in (8, 4, 2, 1): A(f"{op}_dpp v{v}, v{v}, v{v} row_ror:{k} {DP}")
        A(f"v_mov_b32 v{t}, v{v}\nv_permlane16_swap_b32 v{v}, v{t}\n{op} v{v}, v{v}, v{t}")
        A(f"v_mov_b32 v{t}, v{v}\nv_permlane32_swap_b32 v{v}, v{t}\n{op} v{v}, v{v}, v{t}")
    def ln_stats(a, b, t):
        A(f"v_permlane32_swap_b32 v{a}, v{b}\nv_add_f32 v{a}, v{a}, v{b}")
        A(f"v_mov_b32 v{t}, v{a}\nv_permlane16_swap_b32 v{a}, v{t}\nv_add_f32 v{a}, v{a}, v{t}")
        for k in (8, 4, 2, 1): A(f"v_add_f32_dpp v{a}, v{a}, v{a} row_ror:{k} {DP}")
        A(f"v_mul_f32 v{a}, 0x3b000000, v{a}")
        A(f"v_mov_b32 v{b}, v{a}\nv_permlane32_swap_b32 v{a}, v{b}")
        A(f"v_fma_f32 v{b}, -v{a}, v{a}, v{b}\nv_max_f32 v{b}, 0, v{b}")
        rb2(a, b, t)
        A(f"v_add_f32 v{b}, {EPS}, v{b}"); rb1(b)
        A(f"v_sqrt_f32 v{b}, v{b}"); rb1(b)
        A(f"v_rcp_f32 v{b}, v{b}")
    def red4(b):
        A(f"v_permlane32_swap_b32 v{b}, v{b+2}\nv_permlane32_swap_b32 v{b+1}, v{b+3}\nv_add_f32 v{b}, v{b}, v{b+2}\nv_add_f32 v{b+1}, v{b+1}, v{b+3}")
        A(f"v_permlane16_swap_b32 v{b}, v{b+1}\nv_add_f32 v{b}, v{b}, v{b+1}")
    def red8(b):
        A(f"v_pk_add_f32 v[{b}:{b+1}], v[{b}:{b+1}], v[{b+4}:{b+5}]\nv_pk_add_f32 v[{b+2}:{b+3}], v[{b+2}:{b+3}], v[{b+6}:{b+7}]")
        red4(b)
    def store_lg(ins):
        g = lab("sg"); d = lab("sd")
        if force_global: A(ins + " sc1"); return
        A(f"s_cmp_eq_u32 s94, 2\ns_cbranch_scc0 {g}\n{ins}\ns_branch {d}\n{g}:\n{ins} sc1\n{d}:")
    def write_stamps(slot):
        if not stamps: return
        A("s_waitcnt lgkmcnt(0)")
        A(f"s_lshl_b32 s9, s2, 7\ns_add_u32 s9, s9, {STAMP + 64*slot}\nv_mov_b32 v100, 0\ns_mov_b64 exec, 1")
        for j in range(4):
            b = 48 + 4*j
            A(f"v_mov_b32 v104, s{b}\nv_mov_b32 v105, s{b+1}\nv_mov_b32 v106, s{b+2}\nv_mov_b32 v107, s{b+3}")
            A(f"buffer_store_dwordx4 v[104:107], v100, s[20:23], s9 offen offset:{16*j}")
        exec_all()

    A.raw(HEADER + f"; @launch grid=(256,1,1) block=(768,1,1) lds={L_END}")
    A.raw('.amdgcn_target "amdgcn-amd-amdhsa--gfx950"\n.text')
    A.raw(f".globl {KN}_kernel\n.p2align 8\n.type {KN}_kernel,@function\n{KN}_kernel:")
    A("s_cmp_ge_u32 s2, 256\ns_cbranch_scc1 L_done")
    A("s_load_dwordx16 s[64:79], s[0:1], 0\ns_load_dwordx8 s[80:87], s[0:1], 64\ns_load_dwordx4 s[88:91], s[0:1], 96")
    stamp(0)
    A("v_lshrrev_b32 v2, 6, v0\nv_and_b32 v1, 63, v0\nv_readfirstlane_b32 s3, v2")
    A("s_and_b32 s4, s2, 7\ns_lshr_b32 s5, s2, 3\ns_lshl_b32 s6, s4, 2\ns_and_b32 s7, s5, 3\ns_add_u32 s6, s6, s7\ns_lshr_b32 s7, s5, 2")
    A("s_mov_b32 s11, 0xffff0000\nv_lshlrev_b32 v11, 4, v1")
    srd_hi(20, 0x10000000 - wsoff)
    tab = sum(r << (4*k) for k, r in enumerate(ranks))
    A(f"s_lshl_b32 s9, s4, 2\ns_lshr_b32 s47, {hex(tab)}, s9\ns_and_b32 s47, s47, 15")
    A("s_cmp_lt_u32 s3, 4\ns_cbranch_scc1 L_helper")

    dfun = depth; ofun = depth_odd or depth
    A("s_lshl_b32 s24, s6, 20\ns_lshl_b32 s25, s7, 17\ns_add_u32 s24, s24, s25\ns_sub_u32 s26, s3, 4\ns_lshl_b32 s25, s26, 14\ns_add_u32 s24, s24, s25")
    A("s_add_u32 s25, s24, 4096\ns_add_u32 s27, s24, 8192\ns_add_u32 s28, s24, 12288")
    soff = ["s24", "s25", "s27", "s28"]
    A("v_mov_b32 v6, v11")
    srd_hi(12, 0x2000000); srd_hi(16, 0x2000000)
    A("s_waitcnt lgkmcnt(0)")
    srd_lo(12, 66)
    KB, VB = 32, 96
    q = []
    def issue(n):
        t = n % 16
        r = (KB if n < 16 else VB) + 4*t
        A(f"buffer_load_dwordx4 v[{r}:{r+3}], v6, {'s[12:15]' if n < 16 else 's[16:19]'}, {soff[t//4]} offen offset:{(t%4)*1024} nt")
        q.append(n)
    def wait_for(tag):
        k = len(q) - 1 - q.index(tag)
        A(f"s_waitcnt vmcnt({k})")
    def throttle(n):
        if adapt and n >= adapt["n0"]:
            ds, th = adapt["d"], adapt["th"]
            tn = int(round(adapt["t0"] + adapt["dt"] * n))
            go = lab("ad"); kn = lab("kn")
            wait_for(n - ds[0])
            A("s_memrealtime s[42:43]")
            if n < adapt["n1"]:
                A(f"s_cmp_lg_u32 s39, 0\ns_cbranch_scc1 {kn}\nds_read_b32 v2, v0 offset:{L_T}\ns_waitcnt lgkmcnt(0)\nv_readfirstlane_b32 s39, v2\n{kn}:")
            A(f"s_waitcnt lgkmcnt(0)\ns_sub_u32 s9, s42, s39\ns_cmp_eq_u32 s39, 0\ns_cselect_b32 s9, {tn + adapt['dflt']}, s9")
            for k in range(len(th)):
                A(f"s_cmp_gt_i32 s9, {tn + th[k]}\ns_cbranch_scc1 {go}")
                wait_for(n - ds[k+1])
            A(f"{go}:")
            return
        de, do = dfun(n), ofun(n)
        lo, hi = min(de, do), max(de, do)
        if n - hi >= 0: wait_for(n - hi)
        if lo != hi and n - lo >= 0:
            sk = lab("th")
            A(f"s_cbranch_vccnz {sk}" if do > de else f"s_cbranch_vccz {sk}"); wait_for(n - lo); A(f"{sk}:")
    d0 = 0
    while d0 < min(dfun(d0), ofun(d0)):
        if hold is not None and d0 == hold: A("s_cmp_lt_u32 s47, 2\ns_cbranch_scc1 L_stream2")
        issue(d0); d0 += 1
    A("s_branch L_stream2")

    A("L_helper:")
    inh[0] = True
    A("s_getpc_b64 s[92:93]\nL_pc:")
    A(f"s_lshl_b32 s9, s5, 9\nv_lshl_add_u32 v106, v0, 7, s9\nv_min_u32 v106, L_done-L_pc, v106\nv_cmp_gt_u32 vcc, 4, v0\ns_and_saveexec_b64 s[94:95], vcc\ns_cbranch_execz L_nopf")
    A("global_load_dword v107, v106, s[92:93]\nL_nopf:")
    exec_all()
    A(f"s_setprio {hprio}")
    A("v_lshrrev_b32 v2, 3, v1\nv_and_b32 v3, 7, v1\nv_lshlrev_b32 v3, 4, v3")
    if adapt: A("s_memrealtime s[44:45]")
    A("s_lshl_b32 s95, s5, 1\ns_cmp_ge_u32 s47, 2\ns_cselect_b32 s10, s95, 0\ns_cselect_b32 s96, 62, 0\ns_add_u32 s95, s95, s10\ns_add_u32 s95, s95, s96\ns_add_u32 s95, s95, s47")
    A("s_cmp_eq_u32 s47, 15\ns_cselect_b32 s95, 255, s95")
    A("s_and_b32 s96, s95, 3\ns_lshl_b32 s96, s96, 2\ns_add_u32 s96, s96, s3")
    A("v_mul_u32_u24 v100, 24576, v2\nv_add_u32 v100, v100, v3")
    A("v_lshlrev_b32 v101, 3, v2")
    A(f"s_lshl_b32 s34, s96, 6\ns_mul_i32 s35, s96, {32*6144}\ns_lshr_b32 s10, s95, 2\ns_lshl_b32 s10, s10, 7\ns_add_u32 s35, s35, s10")
    srd_hi(12, 512*6144); srd_hi(40, 1024); srd_hi(16, 512*8192); srd_hi(36, 1024)
    A("s_cmp_ge_u32 s95, 192\ns_waitcnt lgkmcnt(0)")
    srd_lo(12, 84); srd_lo(40, 82)
    stamp4(1)
    A("s_cbranch_scc1 L_nomodld")
    A("buffer_load_dwordx2 v[84:85], v101, s[40:43], s34 offen")
    for t in range(4):
        A(f"buffer_load_dwordx4 v[{32+4*t}:{35+4*t}], v100, s[12:15], s35 offen nt")
        if t < 3: A("s_add_u32 s35, s35, 6144")
    A("L_nomodld:")
    srd_lo(20, 90); srd_lo(16, 70); srd_lo(36, 64)
    A("s_load_dword s8, s[90:91], 0")
    A("v_lshrrev_b32 v102, 4, v1\nv_and_b32 v103, 15, v1")
    A("v_lshlrev_b32 v104, 15, v102\nv_lshl_add_u32 v104, v103, 4, v104")
    A("v_and_b32 v105, 2, v1\nv_lshlrev_b32 v105, 1, v105\nv_lshl_add_u32 v105, v102, 3, v105")
    A("s_lshl_b32 s97, s7, 2\ns_add_u32 s97, s97, s3")
    A("buffer_load_dwordx4 v[88:91], v11, s[36:39], 0 offen")
    A("s_lshl_b32 s9, s97, 5\nbuffer_load_dword v92, v105, s[36:39], s9 offen")
    A("s_lshl_b32 s34, s97, 17\ns_lshl_b32 s10, s6, 8\ns_add_u32 s34, s34, s10")
    def wq_loads():
        for t in range(4):
            A(f"buffer_load_dwordx4 v[{48+4*t}:{51+4*t}], v104, s[16:19], s34 offen nt")
            if t < 3: A("s_add_u32 s34, s34, 8192")
    A("s_cmp_lt_u32 s47, 2\ns_cbranch_scc1 L_wq0")
    wq_loads()
    A("L_wq0:")
    if stamps:
        for k in range(2 if stamps == 4 else 1, 8): A(f"s_mov_b64 s[{48+2*k}:{49+2*k}], 0")
    A("v_mov_b32 v0, 0")
    A(f"s_lshl_b32 s98, s6, 11\ns_lshl_b32 s9, s7, 8\ns_add_u32 s98, s98, s9")
    A("s_and_b32 s99, s5, 3\ns_lshl_b32 s99, s99, 3\ns_add_u32 s99, s99, s4")
    A("v_mov_b32 v16, -1\nv_mov_b32 v17, -1\nv_mov_b32 v18, -1\nv_mov_b32 v19, -1")
    if prewrite:
        A("s_cmp_lg_u32 s3, 0\ns_cbranch_scc1 L_nopw\ns_cmp_ge_u32 s95, 192\ns_cbranch_scc1 L_nopw")
        execm(0xffffffff, 0)
        A(f"s_lshl_b32 s9, s95, 9\ns_add_u32 s9, s9, {R_MOD}\nbuffer_store_dwordx4 v[16:19], v11, s[20:23], s9 offen sc1")
        exec_all()
        A("L_nopw:")
    A("s_cmp_lg_u32 s3, 3\ns_cbranch_scc1 L_norst")
    if prewrite:
        A(f"s_lshl_b32 s9, s4, 8\ns_lshl_b32 s10, s5, 3\ns_add_u32 s9, s9, s10\ns_add_u32 s9, s9, {R_RDY}\ns_mov_b64 exec, 1\nbuffer_store_dwordx2 v[16:17], v0, s[20:23], s9 offen sc1")
    execm(0xffffffff, 0)
    A(f"s_lshl_b32 s10, s98, 1\ns_add_u32 s9, s10, {R_O}\nbuffer_store_dwordx4 v[16:19], v11, s[20:23], s9 offen sc1")
    execm(0xffff, 0)
    A(f"s_add_u32 s9, s98, {R_Y}\nbuffer_store_dwordx4 v[16:19], v11, s[20:23], s9 offen sc1")
    A(f"s_add_u32 s9, s98, {R_GU}\nbuffer_store_dwordx4 v[16:19], v11, s[20:23], s9 offen sc1")
    A(f"s_lshl_b32 s9, s99, 11\ns_lshl_b32 s10, s7, 8\ns_add_u32 s9, s9, s10\ns_add_u32 s9, s9, {R_OP}\nbuffer_store_dwordx4 v[16:19], v11, s[20:23], s9 offen sc1")
    execm(0xf, 0)
    A(f"s_lshr_b32 s9, s98, 2\ns_add_u32 s9, s9, {R_ML}\nbuffer_store_dwordx4 v[16:19], v11, s[20:23], s9 offen sc1")
    A(f"s_lshl_b32 s9, s4, 11\ns_lshl_b32 s10, s5, 6\ns_add_u32 s9, s9, s10\ns_add_u32 s9, s9, {R_X2}\nbuffer_store_dwordx4 v[16:19], v11, s[20:23], s9 offen sc1")
    exec_all()
    A("L_norst:")
    stamp4(2)
    A("s_barrier")
    stamp4(3)
    masks(1, 4, 8, 9)
    A("v_mov_b32 v8, 1.0")
    A("v_and_b32 v9, 16, v1\nv_lshl_add_u32 v9, v3, 1, v9\nv_and_b32 v10, 32, v1\nv_lshl_add_u32 v9, v10, 3, v9\ns_lshl_b32 s9, s3, 9\nv_add_u32 v9, s9, v9")
    A("v_lshlrev_b32 v10, 4, v102\nv_lshl_add_u32 v10, v103, 5, v10\nv_add_u32 v10, s9, v10")
    def tile128(src_dup, nt, breg, lds_off):
        for t in range(nt):
            for r in range(4): A(f"v_and_b32 v{16+4*t+r}, v{src_dup[t]}, v{4+r}")
            if t >= 1: A(f"v_mfma_f32_16x16x32_bf16 v[12:15], v[{12+4*t}:{15+4*t}], v[{breg+4*t-4}:{breg+4*t-1}], {'0' if t == 1 else 'v[12:15]'}")
        t = nt - 1
        A(f"v_mfma_f32_16x16x32_bf16 v[12:15], v[{16+4*t}:{19+4*t}], v[{breg+4*t}:{breg+4*t+3}], v[12:15]")
        execm(0x00ff00ff, 0xff00ff00)
        A(f"ds_write_b128 v9, v[12:15] offset:{lds_off}")
        exec_all()
    def sig(off):
        A(f"v_mov_b32 v108, 1\ns_mov_b64 exec, 1\nds_add_u32 v0, v108 offset:{off}"); exec_all()
    if adapt:
        A("s_cmp_lg_u32 s2, 0\ns_cbranch_scc1 L_not\ns_cmp_lg_u32 s3, 1\ns_cbranch_scc1 L_not")
        A(f"s_waitcnt lgkmcnt(0)\ns_add_u32 s10, s8, {GOLD}\ns_cmp_eq_u32 s10, -1\ns_cselect_b32 s10, 0, s10\nv_mov_b32 v108, s44\nv_mov_b32 v109, s10")
        A(f"s_mov_b64 exec, 1\nbuffer_store_dwordx2 v[108:109], v0, s[20:23], 0 offen offset:{R_T} sc1"); exec_all()
        A("L_not:")
    A("s_cmp_lt_u32 s95, 192\ns_cbranch_scc1 L_mod")
    n3 = 7 if prewrite else 6; n0 = 1 if prewrite else 0
    def wait_pw(base, tile):
        a = lab("wa"); b = lab("wb")
        A(f"s_cmp_eq_u32 s3, 3\ns_cbranch_scc1 {a}")
        if tile and n0: A(f"s_cmp_eq_u32 s3, 0\ns_cbranch_scc1 {b}\ns_waitcnt vmcnt({base})\n{b}:\ns_waitcnt vmcnt({base+n0})")
        else: A(f"s_waitcnt vmcnt({base})")
        A(f"{a}:\ns_waitcnt vmcnt({base+n3})")
    wait_pw(0, False)
    stamp4(5)
    if nt_delay: A(f"s_sleep {nt_delay}")
    A("s_branch L_nomod\nL_mod:")
    wait_pw(6, True)
    stamp4(4)
    A("v_lshlrev_b32 v108, 16, v84\nv_and_b32 v109, s11, v84\nv_lshlrev_b32 v110, 16, v85\nv_and_b32 v111, s11, v85")
    for k in range(4): A(f"v_mul_f32 v{112+k}, 0xbfb8aa3b, v{108+k}")
    for k in range(4): A(f"v_exp_f32 v{112+k}, v{112+k}")
    for k in range(4): A(f"v_add_f32 v{112+k}, 1.0, v{112+k}")
    for k in range(4): A(f"v_rcp_f32 v{112+k}, v{112+k}")
    for k in range(4): A(f"v_mul_f32 v{112+k}, v{108+k}, v{112+k}")
    for k in range(4): A(f"v_cvt_pk_bf16_f32 v{112+k}, v{112+k}, v{112+k}")
    wait_pw(0, True)
    stamp4(5)
    tile128([112, 113, 114, 115], 4, 32, L_MOD)
    sig(L_CMOD)
    A("s_cmp_lg_u32 s3, 0\ns_cbranch_scc1 L_nopub")
    lds_wait(L_CMOD, 4, 0, 108, sleep=0)
    A("v_lshlrev_b32 v108, 3, v1")
    for k in range(8): A(f"ds_read_b64 v[{16+2*k}:{17+2*k}], v108 offset:{L_MOD + 256*k}")
    A(f"s_add_u32 s10, s8, {GOLD}\ns_cmp_eq_u32 s10, -1\ns_cselect_b32 s10, 0, s10\nv_mov_b32 v113, s10\nv_mov_b32 v115, s10\ns_lshl_b32 s9, s95, 9\ns_add_u32 s9, s9, {R_MOD}\ns_waitcnt lgkmcnt(0)")
    for st in (8, 4):
        for k in range(0, st, 2): A(f"v_pk_add_f32 v[{16+k}:{17+k}], v[{16+k}:{17+k}], v[{16+st+k}:{17+st+k}]")
    A("v_add_f32 v112, v16, v18\nv_add_f32 v114, v17, v19")
    execm(0xffffffff, 0)
    A("buffer_store_dwordx4 v[112:115], v11, s[20:23], s9 offen sc1")
    exec_all()
    if hold is not None: sig(L_PUB)
    A("L_nopub:")
    if hold is not None:
        A("s_cmp_ge_u32 s47, 2\ns_cbranch_scc1 L_nomod")
        lds_wait(L_PUB, 1, 0, 108, sleep=0)
        wq_loads()
    A("L_nomod:")
    stamp(1); stamp4(6)
    A(f"s_waitcnt lgkmcnt(0)\ns_add_u32 s8, s8, {GOLD}\ns_cmp_eq_u32 s8, -1\ns_cselect_b32 s8, 0, s8")
    A("s_getreg_b32 s100, hwreg(HW_REG_XCC_ID, 0, 4)")
    A("s_cmp_lg_u32 s3, 3\ns_cbranch_scc1 L_nordy")
    A(f"v_mov_b32 v108, s100\nv_mov_b32 v109, s8\ns_lshl_b32 s9, s4, 8\ns_lshl_b32 s10, s5, 3\ns_add_u32 s9, s9, s10\ns_add_u32 s9, s9, {R_RDY}")
    A("s_cmp_lt_u32 s47, 2\ns_cbranch_scc1 L_rd4\ns_waitcnt vmcnt(0)\nL_rd4:\ns_waitcnt vmcnt(4)\ns_mov_b64 exec, 1\nbuffer_store_dwordx2 v[108:109], v0, s[20:23], s9 offen sc1"); exec_all()
    A("L_nordy:")
    A("v_mov_b32 v110, 0x3f803f80")
    A("v_dot2_f32_bf16 v108, v88, v110, 0\nv_dot2_f32_bf16 v109, v88, v88, 0")
    for k in range(1, 4): A(f"v_dot2_f32_bf16 v108, v{88+k}, v110, v108\nv_dot2_f32_bf16 v109, v{88+k}, v{88+k}, v109")
    ln_stats(108, 109, 110)
    A("v_lshlrev_b32 v112, 16, v92\nv_and_b32 v113, s11, v92\nv_sub_f32 v112, v112, v108\nv_sub_f32 v113, v113, v108")
    rb2(112, 113, 110)
    A("v_mul_f32 v112, v112, v109\nv_mul_f32 v113, v113, v109")
    rb2(112, 113, 110)
    A("v_and_b32 v100, 1, v1\nv_lshlrev_b32 v100, 14, v100\nv_lshrrev_b32 v101, 2, v103\nv_lshl_add_u32 v100, v101, 9, v100\nv_lshl_add_u32 v100, v105, 2, v100")
    A(f"s_lshl_b32 s101, s7, 11\ns_lshl_b32 s9, s3, 7\ns_add_u32 s101, s101, s9\ns_add_u32 s101, s101, {R_MOD}")
    stamp4(7)
    if p2_delay: A(f"s_sleep {p2_delay}")
    sp2 = sleep_mid if sleep_p2 is None else sleep_p2
    if adapt:
        A("s_cmp_lg_u32 s3, 0\ns_cbranch_scc1 L_p2b")
        poll(["buffer_load_dwordx4 v[84:87], v100, s[20:23], s101 offen sc1", f"buffer_load_dwordx2 v[88:89], v0, s[20:23], 0 offen offset:{R_T} sc1"], chk_tags([85, 87, 89], 108), sp2)
        A(f"ds_write_b32 v0, v88 offset:{L_T}\ns_branch L_p2c\nL_p2b:")
    poll(["buffer_load_dwordx4 v[84:87], v100, s[20:23], s101 offen sc1"], chk_tags([85, 87], 108), sp2, diag=(4, 5, 6) if stamps == 3 else None)
    if adapt: A("L_p2c:")
    stamp(2)
    for k in (4, 8):
        A(f"v_add_f32_dpp v84, v84, v84 row_ror:{k} {DP}\nv_add_f32_dpp v86, v86, v86 row_ror:{k} {DP}")
    rb2(84, 86, 110)
    A(f"v_add_f32_dpp v114, v84, v8 quad_perm:[1,1,3,3] {DP}\nv_add_f32_dpp v115, v86, v8 quad_perm:[1,1,3,3] {DP}")
    rb2(114, 115, 110)
    A("v_mul_f32 v112, v112, v114\nv_mul_f32 v113, v113, v115")
    rb2(112, 113, 110)
    A(f"v_add_f32_dpp v112, v84, v112 quad_perm:[0,0,2,2] {DP}\nv_add_f32_dpp v113, v86, v113 quad_perm:[0,0,2,2] {DP}")
    A("v_cvt_pk_bf16_f32 v112, v112, v112\nv_cvt_pk_bf16_f32 v113, v113, v113")
    for t in range(4):
        z = 2*(t >> 1)
        for r in range(4): A(f"v_and_b32_dpp v{16+4*t+r}, v{112+(t&1)}, v{4+r} quad_perm:[{z},{z},{z},{z}] {DP}")
    for t in range(4):
        A(f"v_mfma_f32_16x16x32_bf16 v[12:15], v[{16+4*t}:{19+4*t}], v[{48+4*t}:{51+4*t}], {'0' if t == 0 else 'v[12:15]'}")
    execm(0xffffffff, 0)
    A(f"ds_write_b128 v10, v[12:15] offset:{L_QP}")
    exec_all()
    sig(L_CQP)
    A("s_cmp_lg_u32 s3, 1\ns_cbranch_scc1 L_noqp")
    lds_wait(L_CQP, 4, 0, 108, sleep=0)
    A("v_lshlrev_b32 v108, 3, v1")
    for k in range(4): A(f"ds_read_b64 v[{16+2*k}:{17+2*k}], v108 offset:{L_QP + 512*k}")
    A(f"v_mov_b32 v113, s8\nv_mov_b32 v115, s8\ns_lshl_b32 s9, s98, 2\ns_add_u32 s9, s9, {R_Q}\ns_add_u32 s10, s9, 0x40000\ns_waitcnt lgkmcnt(0)")
    A("v_pk_add_f32 v[16:17], v[16:17], v[20:21]\nv_pk_add_f32 v[18:19], v[18:19], v[22:23]\nv_add_f32 v112, v16, v18\nv_add_f32 v114, v17, v19")
    A("buffer_store_dwordx4 v[112:115], v11, s[20:23], s9 offen\nbuffer_store_dwordx4 v[112:115], v11, s[20:23], s10 offen sc1")
    A("L_noqp:")
    A("v_lshlrev_b32 v100, 11, v102\nv_lshl_add_u32 v100, v103, 4, v100")
    A(f"s_lshl_b32 s101, s6, 13\ns_lshl_b32 s9, s3, 8\ns_add_u32 s101, s101, s9\ns_add_u32 s101, s101, {R_Q}")
    A("v_lshrrev_b32 v101, 5, v1\nv_lshlrev_b32 v101, 1, v101\nv_lshl_add_u32 v101, v103, 2, v101\ns_lshl_b32 s9, s3, 6\nv_add_u32 v101, s9, v101")
    if q_delay: A(f"s_sleep {q_delay}")
    poll([f"s_cmp_eq_u32 s10, {LIMIT - (0 if force_global else qsw)}\ns_cselect_b32 s9, 0x40000, 0\ns_add_u32 s101, s101, s9",
          "buffer_load_dwordx4 v[84:87], v100, s[20:23], s101 offen sc1", "buffer_load_dwordx4 v[88:91], v100, s[20:23], s101 offen offset:1024 sc1"], chk_tags([85, 87, 89, 91], 108), sleep_mid, diag=(4, 5, 6) if stamps == 5 else None)
    A("v_add_f32 v84, v84, v88\nv_add_f32 v86, v86, v90\nv_permlane32_swap_b32 v84, v86\nv_add_f32 v84, v84, v86")
    A("v_mov_b32 v86, v84\nv_permlane16_swap_b32 v84, v86\nv_add_f32 v84, v84, v86\nv_cvt_pk_bf16_f32 v84, v84, v84")
    A(f"ds_write_b16 v101, v84 offset:{L_Q}")
    sig(L_CQ)
    stamp(3)
    skip_polls[0] = x_nopoll or x_nomid
    A("s_cmp_lg_u32 s3, 3\ns_cbranch_scc1 L_nw3")
    A(f"s_mov_b32 s101, {R_RDY}\ns_lshl_b32 s34, s4, 8\ns_add_u32 s34, s34, s101\nv_and_b32 v100, 31, v1\nv_lshlrev_b32 v100, 3, v100")
    poll(["buffer_load_dwordx4 v[84:87], v11, s[20:23], s101 offen sc1", "buffer_load_dwordx4 v[88:91], v11, s[20:23], s101 offen offset:1024 sc1", "buffer_load_dwordx2 v[92:93], v100, s[20:23], s34 offen sc1"], chk_tags([85, 87, 89, 91, 93], 108), sleep_mid)
    A("v_cmp_ne_u32 vcc, s100, v92\ns_cmp_eq_u64 vcc, 0\ns_cselect_b32 s9, 2, 1\nv_mov_b32 v108, s9")
    if skip_polls[0]: A("v_mov_b32 v108, 2")
    A(f"ds_write_b32 v0, v108 offset:{L_LOC}")
    A("L_nw3:")
    srd(24, 72, 4096*1024); srd(32, 80, 1376*1024); srd(44, 86, 1024)
    A("s_cmp_ge_u32 s7, 4\ns_cselect_b32 s28, s78, s76\ns_cselect_b32 s29, s79, s77" + f"\ns_mov_b32 s30, {512*2752}\ns_mov_b32 s31, 0x20000")
    A("s_and_b32 s96, s7, 3\ns_lshl_b32 s96, s96, 2\ns_add_u32 s96, s96, s3")
    A("s_cmp_ge_u32 s99, 22\ns_cbranch_scc1 L_nosb")
    A("v_and_b32 v100, 4, v1\nv_lshlrev_b32 v100, 12, v100\nv_and_b32 v101, 3, v1\nv_lshl_add_u32 v100, v101, 9, v100\nv_lshl_add_u32 v100, v2, 5, v100")
    A(f"s_lshr_b32 s101, s96, 1\ns_lshl_b32 s101, s101, 11\ns_and_b32 s9, s3, 1\ns_lshl_b32 s9, s9, 8\ns_add_u32 s101, s101, s9\ns_add_u32 s101, s101, {R_MOD + 24*2048}")
    poll(["buffer_load_dwordx4 v[84:87], v100, s[20:23], s101 offen sc1", "buffer_load_dwordx4 v[88:91], v100, s[20:23], s101 offen offset:16 sc1"], chk_tags([85, 87, 89, 91], 108), sleep_mid)
    for qp in ("[1,0,3,2]", "[2,3,0,1]"):
        for r in (84, 86, 88, 90): A(f"v_add_f32_dpp v{r}, v{r}, v{r} quad_perm:{qp} {DP}")
    rb2(84, 86, 110); rb2(88, 90, 110)
    for k, r in enumerate((84, 86, 88, 90)): A(f"v_mov_b32 v{72+k}, v{r}\nv_mov_b32 v{76+k}, v{r}")
    for k, r in enumerate((84, 86, 88, 90)):
        A(f"v_mov_b32_dpp v{72+k}, v{r} row_half_mirror row_mask:0xf bank_mask:0xa\nv_mov_b32_dpp v{76+k}, v{r} row_half_mirror row_mask:0xf bank_mask:0x5")
    for k in range(4): A(f"v_add_f32 v{76+k}, 1.0, v{76+k}")
    rb2(76, 77, 110); rb2(78, 79, 110)
    A("L_nosb:")
    A("v_lshlrev_b32 v116, 5, v3\nv_lshl_add_u32 v116, v2, 4, v116")
    A("v_lshrrev_b32 v117, 2, v1\nv_lshlrev_b32 v117, 11, v117\nv_and_b32 v101, 3, v1\nv_lshl_add_u32 v117, v101, 4, v117")
    A(f"v_mov_b32 v118, {OOB}\nv_cmp_gt_u32 vcc, 24, v1\nv_cndmask_b32 v118, v118, v117, vcc")
    A("v_lshl_add_u32 v119, v101, 2, v102\nv_lshlrev_b32 v119, 2, v119")
    A("v_lshlrev_b32 v120, 4, v2")
    A("v_lshlrev_b32 v121, 4, v3\nv_lshl_add_u32 v121, v2, 3, v121")
    A("v_and_b32 v122, 3, v2\nv_lshlrev_b32 v122, 4, v122\nv_lshrrev_b32 v127, 2, v2\nv_add_u32 v122, v122, v127\nv_lshl_add_u32 v122, v122, 10, v3")
    A("v_lshlrev_b32 v127, 2, v1")
    A("v_mul_u32_u24 v123, 11008, v2\nv_add_u32 v123, v123, v3")
    A(f"s_cmp_eq_u32 s99, 21\ns_cselect_b32 s9, 64, 128\nv_mov_b32 v101, {OOB}\nv_cmp_gt_u32 vcc, s9, v3\nv_cndmask_b32 v123, v101, v123, vcc")
    A("v_lshl_add_u32 v124, v2, 13, v3")
    A("s_lshl_b32 s97, s7, 6\ns_add_u32 s97, s97, s3")
    A("v_lshlrev_b32 v125, 2, v119\nv_lshlrev_b32 v126, 1, v119")
    A("s_cmp_lt_u32 s99, 24\ns_cbranch_scc1 L_noga")
    A("v_bfe_u32 v100, v1, 2, 2\nv_lshlrev_b32 v100, 9, v100\nv_lshl_add_u32 v100, v119, 3, v100")
    A(f"s_lshl_b32 s101, s7, 11\ns_lshl_b32 s9, s3, 3\ns_add_u32 s101, s101, s9\ns_add_u32 s101, s101, {R_MOD + 16*2048}\ns_add_u32 s100, s101, {24*2048}")
    A("s_lshl_b32 s9, s97, 1\nbuffer_load_ushort v82, v126, s[36:39], s9 offen")
    poll(["buffer_load_dwordx2 v[84:85], v100, s[20:23], s101 offen sc1", "buffer_load_dwordx2 v[86:87], v100, s[20:23], s100 offen sc1"], chk_tags([85, 87], 108), sleep_mid)
    for k in (4, 8):
        A(f"v_add_f32_dpp v84, v84, v84 row_ror:{k} {DP}\nv_add_f32_dpp v86, v86, v86 row_ror:{k} {DP}")
    rb2(84, 86, 110)
    A("v_mov_b32 v80, v84\nv_mov_b32 v81, v86\nv_lshlrev_b32 v82, 16, v82")
    A("L_noga:")
    A("s_cmp_lg_u32 s3, 2\ns_cbranch_scc1 L_mid")
    lds_wait(L_LOC, 1, 0, 108, sleep=2)
    A("s_mov_b32 s94, s9")
    A(f"s_lshl_b32 s101, s6, 9\ns_add_u32 s101, s101, {R_ML}\nv_lshlrev_b32 v100, 3, v1\ns_lshr_b32 s100, s98, 2\ns_add_u32 s100, s100, {R_ML}")
    lds_wait(L_CML, 8, 0, 108, sleep=1)
    A(f"ds_read_b128 v[84:87], v11 offset:{L_REC}\ns_waitcnt lgkmcnt(0)")
    execm(0xf, 0)
    store_lg("buffer_store_dwordx4 v[84:87], v11, s[20:23], s100 offen")
    exec_all()
    poll(["buffer_load_dwordx2 v[84:85], v100, s[20:23], s101 offen sc1"], chk_sent([84, 85], 108), sleep_mid, diag=(4, 5, 6) if stamps == 6 else None)
    A("v_mov_b32 v88, v84"); allred1(88, 90, "v_max_f32")
    A(f"v_sub_f32 v84, v84, v88\nv_mul_f32 v84, {LOG2E}, v84\nv_exp_f32 v84, v84\nv_mul_f32 v89, v84, v85")
    allred1(89, 90, "v_add_f32")
    A("v_rcp_f32 v89, v89")
    A(f"ds_write_b64 v0, v[88:89] offset:{L_M}")
    sig(L_ML)
    A("L_mid:")
    skip_polls[0] = False
    if stamps not in (3, 5, 6): stamp(4)
    A(f"s_lshl_b32 s12, s6, 12\ns_lshl_b32 s9, s3, 7\ns_add_u32 s12, s12, s9\ns_add_u32 s12, s12, {R_O}")
    A(f"s_lshl_b32 s13, s7, 8\ns_lshl_b32 s9, s3, 6\ns_add_u32 s13, s13, s9\ns_add_u32 s14, s13, {R_Y + 16*2048}\ns_add_u32 s16, s13, {R_OP}\ns_add_u32 s17, s13, {R_OP + 16*2048}\ns_add_u32 s13, s13, {R_Y}")
    A(f"s_lshl_b32 s15, s4, 11\ns_add_u32 s15, s15, {R_X2}")
    A("s_lshl_b32 s18, s96, 7\ns_add_u32 s18, s18, s15")
    A(f"s_lshl_b32 s19, s6, 11\ns_lshl_b32 s9, s3, 6\ns_add_u32 s19, s19, s9\ns_add_u32 s19, s19, {R_GU}")
    A("s_lshl_b32 s40, s97, 2\ns_add_u32 s40, s40, s15")
    A(f"s_add_u32 s41, s98, {R_Y}\ns_add_u32 s42, s98, {R_GU}")
    A(f"s_lshl_b32 s43, s99, 11\ns_lshl_b32 s9, s7, 8\ns_add_u32 s43, s43, s9\ns_add_u32 s43, s43, {R_OP}")
    A(f"s_mul_i32 s36, s96, {32*2752}\ns_lshl_b32 s10, s99, 7\ns_add_u32 s36, s36, s10\ns_add_u32 s37, s36, {2*2752}")
    A("s_lshl_b32 s38, s99, 16\ns_lshl_b32 s10, s3, 10\ns_add_u32 s38, s38, s10\ns_lshl_b32 s10, s7, 7\ns_add_u32 s38, s38, s10\ns_add_u32 s39, s38, 4096")
    A("s_lshl_b32 s95, s6, 17\ns_lshr_b32 s10, s3, 1\ns_lshl_b32 s10, s10, 16\ns_add_u32 s95, s95, s10\ns_and_b32 s10, s3, 1\ns_lshl_b32 s10, s10, 11\ns_add_u32 s95, s95, s10\ns_lshl_b32 s10, s7, 7\ns_add_u32 s95, s95, s10")
    if tlb:
        A("s_mov_b64 exec, 1\nbuffer_load_dword v84, v0, s[24:27], s95 offen nt\nbuffer_load_dword v85, v0, s[28:31], s36 offen nt\nbuffer_load_dword v86, v0, s[32:35], s38 offen nt\nbuffer_load_dword v87, v0, s[44:47], 0 offen"); exec_all()
    lds_wait(L_LOC, 1, 0, 108, sleep=2)
    A("s_mov_b32 s94, s9")
    lds_wait(L_CV, 8, 0, 108, sleep=2)
    for t in range(4):
        A(f"buffer_load_dwordx4 v[{32+4*t}:{35+4*t}], v122, s[24:27], s95 offen nt")
        if t < 3: A("s_add_u32 s95, s95, 4096")
    def ffn_loads(gu=True, wd=True):
        sk = lab("nf")
        A(f"s_cmp_ge_u32 s99, 22\ns_cbranch_scc1 {sk}")
        if gu:
            for t in range(4):
                A(f"buffer_load_dwordx4 v[{48+4*t}:{51+4*t}], v123, s[28:31], s{36+t//2} offen offset:{2752*(t&1)} nt")
        if wd: A("buffer_load_dwordx4 v[64:67], v124, s[32:35], s38 offen nt\nbuffer_load_dwordx4 v[68:71], v124, s[32:35], s39 offen nt")
        A(f"{sk}:")
    if not gu_late: ffn_loads()
    if wd_early: ffn_loads(gu=False)
    if pretouch:
        if "O" in pretouch: A("buffer_load_dwordx4 v[84:87], v116, s[20:23], s12 offen sc1")
        if "G" in pretouch: A("s_cmp_ge_u32 s99, 22\ns_cbranch_scc1 L_pt1\nbuffer_load_dwordx2 v[88:89], v121, s[20:23], s19 offen sc1\nL_pt1:")
        if "X" in pretouch: A("s_cmp_lt_u32 s99, 24\ns_cbranch_scc1 L_pt2\nbuffer_load_dword v92, v125, s[20:23], s40 offen sc1\nL_pt2:")
    if stamps not in (3, 5, 6): stamp(5)
    A("s_barrier")
    poll(["buffer_load_dwordx4 v[84:87], v116, s[20:23], s12 offen sc1"], chk_sent([84, 85, 86, 87], 108))
    if gu_late and gu_mode is None: ffn_loads()
    if stamps == 2: stamp(1)
    for c in ("quad_perm:[1,0,3,2]", "quad_perm:[2,3,0,1]", "row_half_mirror"):
        for r in range(84, 88): A(f"v_add_f32_dpp v{r}, v{r}, v{r} {c} {DP}")
    for r in range(84, 88): A(f"v_cvt_pk_bf16_f32 v{r}, v{r}, v{r}")
    tile128([84, 85, 86, 87], 4, 32, L_Y)
    A("s_waitcnt lgkmcnt(0)\ns_barrier")
    def publish64(lds_off, soffs, local):
        sk = lab("pb")
        A(f"s_cmp_lg_u32 s3, 1\ns_cbranch_scc1 {sk}")
        A(f"ds_read_b128 v[84:87], v11 offset:{lds_off}\nds_read_b128 v[88:91], v11 offset:{lds_off+1024}\ns_waitcnt lgkmcnt(0)")
        red8(84)
        ins = f"buffer_store_dword v84, v127, s[20:23], {soffs} offen"
        if local: store_lg(ins)
        else: A(ins + " sc1")
        A(f"{sk}:")
    if stamps == 2:
        stamp(2)
        for k in range(3, 7): A(f"s_mov_b64 s[{48+2*k}:{49+2*k}], 0")
    publish64(L_Y, "s41", False)
    if gu_mode == "afterY":
        A(f"s_cmp_eq_u32 s3, 1\ns_cbranch_scc1 L_gy\ns_sleep {gu_sleep}\nL_gy:")
        ffn_loads(wd=not wd_early)
    def gather16(s_lo, s_hi, v_hi):
        if pipe == 1:
            poll([f"buffer_load_dwordx4 v[84:87], v117, s[20:23], {s_lo} offen sc1", f"buffer_load_dwordx4 v[88:91], v{v_hi}, s[20:23], {s_hi} offen sc1"], chk_sent(list(range(84, 92)), 108))
        else:
            bufs = [128 + 8*k for k in range(pipe)]
            ld = lambda b: A(f"buffer_load_dwordx4 v[{b}:{b+3}], v117, s[20:23], {s_lo} offen sc1\nbuffer_load_dwordx4 v[{b+4}:{b+7}], v{v_hi}, s[20:23], {s_hi} offen sc1")
            l = lab("pp"); d = lab("pe"); ex = [lab("px") for _ in bufs]
            A(f"s_mov_b32 s10, {LIMIT}")
            for k in range(pipe - 1):
                ld(bufs[k])
                if pipe_gap: A(f"s_sleep {pipe_gap}")
            A(f"{l}:")
            for k in range(pipe):
                ld(bufs[(k + pipe - 1) % pipe])
                A(f"s_waitcnt vmcnt({2*(pipe-1)})")
                chk_sent(list(range(bufs[k], bufs[k] + 8)), 108)()
                A(f"s_cbranch_vccz {ex[k]}")
                if pipe_gap: A(f"s_sleep {pipe_gap}")
            A(f"s_sub_u32 s10, s10, 1\ns_cbranch_scc0 {l}")
            for k in range(pipe):
                b = bufs[k]
                A(f"{ex[k]}:\nv_pk_add_f32 v[84:85], v[{b}:{b+1}], v[{b+4}:{b+5}]\nv_pk_add_f32 v[86:87], v[{b+2}:{b+3}], v[{b+6}:{b+7}]")
                if k < pipe - 1: A(f"s_branch {d}")
            A(f"{d}:")
        (red8 if pipe == 1 else red4)(84)
        A(f"v_add_f32_dpp v84, v84, v84 row_ror:4 {DP}\nv_add_f32_dpp v84, v84, v84 row_ror:8 {DP}")
        rb1(84)
    A("s_cmp_ge_u32 s99, 22\ns_cbranch_scc1 L_red")
    poll(["buffer_load_dwordx4 v[84:87], v11, s[20:23], s15 offen sc1", "buffer_load_dwordx4 v[88:91], v11, s[20:23], s15 offen offset:1024 sc1", "buffer_load_dwordx4 v[92:95], v120, s[20:23], s18 offen sc1"], chk_sent(list(range(84, 96)), 108))
    if stamps == 2: stamp(4)
    A("v_pk_add_f32 v[96:97], v[84:85], v[86:87]\nv_pk_mul_f32 v[98:99], v[84:85], v[84:85]")
    A("v_pk_add_f32 v[96:97], v[96:97], v[88:89]\nv_pk_fma_f32 v[98:99], v[86:87], v[86:87], v[98:99]")
    A("v_pk_add_f32 v[96:97], v[96:97], v[90:91]\nv_pk_fma_f32 v[98:99], v[88:89], v[88:89], v[98:99]")
    A("v_add_f32 v108, v96, v97\nv_pk_fma_f32 v[98:99], v[90:91], v[90:91], v[98:99]\nv_add_f32 v109, v98, v99")
    ln_stats(108, 109, 110)
    for k in range(4): A(f"v_sub_f32 v{92+k}, v{92+k}, v108")
    rb2(92, 93, 110); rb2(94, 95, 111)
    for k in range(4): A(f"v_mul_f32 v{92+k}, v{92+k}, v109")
    rb2(92, 93, 110); rb2(94, 95, 111)
    A("v_pk_mul_f32 v[92:93], v[92:93], v[76:77]\nv_pk_mul_f32 v[94:95], v[94:95], v[78:79]")
    rb2(92, 93, 110); rb2(94, 95, 111)
    A("v_pk_add_f32 v[92:93], v[92:93], v[72:73]\nv_pk_add_f32 v[94:95], v[94:95], v[74:75]")
    for k in range(4): A(f"v_cvt_pk_bf16_f32 v{92+k}, v{92+k}, v{92+k}")
    tile128([92, 93, 94, 95], 4, 48, L_GU)
    A("s_waitcnt lgkmcnt(0)\ns_barrier")
    publish64(L_GU, "s42", True)
    if stamps == 2: stamp(5)
    poll(["buffer_load_dwordx2 v[88:89], v121, s[20:23], s19 offen sc1"], chk_sent([88, 89], 108))
    if stamps == 2: stamp(6)
    for qp in ("[1,0,3,2]", "[2,3,0,1]"):
        for r in (88, 89): A(f"v_add_f32_dpp v{r}, v{r}, v{r} quad_perm:{qp} {DP}")
    rb2(88, 89, 110)
    A(f"v_mul_f32_dpp v90, v88, v88 row_half_mirror {DP}\nv_mul_f32_dpp v91, v89, v89 row_half_mirror {DP}")
    A("v_cvt_pk_bf16_f32 v90, v90, v90\nv_cvt_pk_bf16_f32 v91, v91, v91")
    tile128([90, 91], 2, 64, L_D)
    A("s_waitcnt lgkmcnt(0)\ns_barrier")
    publish64(L_D, "s43", False)
    A("s_branch L_fin2")
    A("L_red:")
    A("s_cmp_lt_u32 s99, 24\ns_cbranch_scc1 L_fin2")
    if d1_delay: A(f"s_sleep {d1_delay}")
    gather16("s13", "s14", 117)
    if stamps == 2: stamp(3)
    A("v_mul_f32 v84, v80, v84"); rb1(84)
    A("v_add_f32 v83, v82, v84"); rb1(83)
    execm(0x000f000f, 0x000f000f)
    store_lg("buffer_store_dword v83, v125, s[20:23], s40 offen")
    exec_all()
    A("s_cmp_lg_u32 s7, s4\ns_cbranch_scc1 L_fin2")
    if f_delay: A(f"s_sleep {f_delay}")
    gather16("s16", "s17", 118)
    A("v_mul_f32 v84, v81, v84"); rb1(84)
    A("v_add_f32 v84, v83, v84\nv_cvt_pk_bf16_f32 v84, v84, v84\ns_lshl_b32 s9, s97, 1")
    execm(0x000f000f, 0x000f000f)
    A("buffer_store_short v84, v126, s[44:47], s9 offen")
    A("s_add_u32 s9, s4, s3\ns_cmp_lg_u32 s9, 0\ns_cbranch_scc1 L_noep")
    A("v_mov_b32 v85, s8\ns_mov_b64 exec, 1\nbuffer_store_dword v85, v0, s[20:23], 0 offen sc1")
    A("L_noep:")
    exec_all()
    stamp(7)
    A("L_fin2:")
    if stamps:
        A(f"s_cmp_lg_u32 s3, {stampwave}\ns_cbranch_scc1 L_done")
        write_stamps(0)
    A("s_endpgm")

    A("L_stream2:")
    inh[0] = False
    srd_lo(16, 68); srd_lo(20, 90)
    if stamps:
        for k in range(1, 8): A(f"s_mov_b64 s[{48+2*k}:{49+2*k}], 0")
    A("v_mov_b32 v0, 0\nv_lshlrev_b32 v2, 2, v1\nds_write_b32 v2, v0\ns_waitcnt lgkmcnt(0)\ns_barrier")
    masks(1, 28, 2, 3)
    A("s_mov_b32 s30, 0xaaaaaaaa\ns_mov_b32 s31, 0xaaaaaaaa\ns_mov_b32 s32, 0xcccccccc\ns_mov_b32 s33, 0xcccccccc")
    A("v_and_b32 v3, 15, v1\nv_lshlrev_b32 v3, 4, v3")
    A("v_and_b32 v4, 16, v1\nv_and_b32 v2, 7, v1\nv_lshl_add_u32 v4, v2, 5, v4\nv_and_b32 v2, 8, v1\nv_lshl_add_u32 v4, v2, 8, v4\ns_lshl_b32 s9, s26, 8\nv_add_u32 v4, s9, v4")
    A("s_lshl_b32 s9, s26, 11\nv_add_u32 v7, s9, v6")
    A(f"s_lshl_b32 s29, s6, 12\ns_lshl_b32 s10, s7, 9\ns_add_u32 s29, s29, s10\ns_lshl_b32 s10, s26, 8\ns_add_u32 s29, s29, s10\ns_add_u32 s29, s29, {R_O}")
    A("s_lshl_b32 s36, s26, 3")
    if depth_odd is not None:
        A("s_and_b32 s34, s4, 1\ns_mov_b32 s35, 0\ns_mov_b64 vcc, s[34:35]")
    if hold is not None:
        A("s_cmp_ge_u32 s47, 2\ns_cbranch_scc1 L_nohold")
        lds_wait(L_PUB, 1, 0, 2)
        qs = list(q)
        for n in range(hold, d0): issue(n)
        q[:] = qs
        A("L_nohold:")
    A("s_mov_b32 s38, 0\ns_mov_b32 s39, 0")
    cv_done = False
    def sig_cv():
        A("v_mov_b32 v10, 1\ns_mov_b64 exec, 1" + f"\nds_add_u32 v0, v10 offset:{L_CV}"); exec_all()
    for n in range(d0, 32):
        throttle(n); issue(n)
        if n >= cv_at and not cv_done: sig_cv(); cv_done = True
        if n == p1: stamp(1)
        if p1 <= n < p1max:
            sk = lab("qk")
            A(f"s_cmp_lg_u32 s38, 0\ns_cbranch_scc1 {sk}")
            A(f"ds_read_b32 v2, v0 offset:{L_CQ}\ns_waitcnt lgkmcnt(0)\nv_readfirstlane_b32 s9, v2\ns_cmp_lt_u32 s9, 4\ns_cbranch_scc1 {sk}")
            wait_for(15)
            A(f"s_call_b64 s[40:41], L_qk\n{sk}:")
        if n == p1max:
            sk = lab("qk")
            A(f"s_cmp_lg_u32 s38, 0\ns_cbranch_scc1 {sk}")
            lds_wait(L_CQ, 4, 0, 2)
            wait_for(15)
            A(f"s_call_b64 s[40:41], L_qk\n{sk}:")
    stamp(4)
    if not x_noml: lds_wait(L_ML, 1, 0, 2)
    A(f"ds_read_b64 v[8:9], v0 offset:{L_M}\nds_read_b32 v2, v0 offset:{L_LOC}\ns_waitcnt lgkmcnt(0)\nv_readfirstlane_b32 s94, v2")
    stamp(5)
    A(f"v_sub_f32 v5, v5, v8\nv_mul_f32 v5, {LOG2E}, v5\nv_exp_f32 v5, v5\nv_mul_f32 v5, v5, v9\nv_cvt_pk_bf16_f32 v5, v5, v5")
    A("v_lshlrev_b32 v2, 2, v1")
    for t in range(16):
        for r in range(4): A(f"v_and_b32_dpp v{KB+4*t+r}, v5, v{28+r} row_newbcast:{t} {DP}")
    for t in range(16):
        if 16 + t > 31 - max(dfun(31), ofun(31), adapt["d"][0] if adapt else 0): wait_for(16 + t)
        A(f"v_mfma_f32_16x16x32_bf16 v[12:15], v[{KB+4*t}:{KB+4*t+3}], v[{VB+4*t}:{VB+4*t+3}], {'0' if t == 0 else 'v[12:15]'}")
    stamp(6)
    execm(0xffffffff, 0)
    A(f"ds_write_b128 v4, v[12:15] offset:{L_O}")
    exec_all()
    A("s_waitcnt lgkmcnt(0)\ns_barrier")
    A("s_cmp_gt_u32 s3, 5\ns_cbranch_scc1 L_done")
    A(f"ds_read_b128 v[12:15], v7 offset:{L_O}\nds_read_b128 v[16:19], v7 offset:{L_O+1024}\ns_waitcnt lgkmcnt(0)")
    red8(12)
    store_lg("buffer_store_dword v12, v2, s[20:23], s29 offen")
    if stamps: A("s_cmp_lg_u32 s3, 4\ns_cbranch_scc1 L_done")
    stamp(7)
    write_stamps(1)
    A("s_endpgm")
    A("L_qk:")
    A(f"ds_read_b128 v[24:27], v3 offset:{L_Q}\ns_mov_b32 s38, 1\ns_waitcnt lgkmcnt(0)")
    stamp(2)
    for k in range(4):
        for t in range(16):
            if k == 0: A(f"v_dot2_f32_bf16 v{8+t}, v{KB+4*t}, v24, 0")
            else: A(f"v_dot2c_f32_bf16 v{8+t}, v{KB+4*t+k}, v{24+k}")
    for t in range(8): A(f"v_add_f32_dpp v{8+t}, v{8+t}, v{8+t} row_ror:8 row_mask:0xf bank_mask:0x3")
    for t in range(8): A(f"v_add_f32_dpp v{8+t}, v{16+t}, v{16+t} row_ror:8 row_mask:0xf bank_mask:0xc")
    for t in range(4): A(f"v_add_f32_dpp v{8+t}, v{8+t}, v{8+t} row_shl:4 row_mask:0xf bank_mask:0x5")
    for t in range(4): A(f"v_add_f32_dpp v{8+t}, v{12+t}, v{12+t} row_shr:4 row_mask:0xf bank_mask:0xa")
    for t in range(4): A(f"v_add_f32_dpp v{8+t}, v{8+t}, v{8+t} quad_perm:[1,0,3,2] {DP}")
    for t in range(4): A(f"v_add_f32_dpp v{8+t}, v{8+t}, v{8+t} quad_perm:[2,3,0,1] {DP}")
    A("v_cndmask_b32 v8, v8, v9, s[30:31]\nv_cndmask_b32 v10, v10, v11, s[30:31]\nv_cndmask_b32 v5, v8, v10, s[32:33]")
    rb1(5); A(f"v_mul_f32 v5, {SCALE}, v5"); rb1(5)
    A("v_mov_b32 v8, v5"); allred1(8, 10, "v_max_f32")
    A(f"v_sub_f32 v9, v5, v8\nv_mul_f32 v9, {LOG2E}, v9\nv_exp_f32 v9, v9")
    allred1(9, 10, "v_add_f32")
    A(f"v_mov_b32 v10, s36\nv_mov_b32 v11, 1\ns_mov_b64 exec, 1\nds_write_b64 v10, v[8:9] offset:{L_REC}\nds_add_u32 v0, v11 offset:{L_CML}")
    exec_all()
    stamp(3)
    A("s_setpc_b64 s[40:41]")
    A("L_done:\ns_endpgm")
    A.raw('.section .rodata,"a"\n.p2align 6\n' + f".amdhsa_kernel {KN}_kernel")
    A.raw("  .amdhsa_next_free_vgpr 168\n  .amdhsa_next_free_sgpr 102\n  .amdhsa_accum_offset 168\n  .amdhsa_group_segment_fixed_size 0\n  .amdhsa_kernarg_size 112")
    A.raw("  .amdhsa_user_sgpr_count 2\n  .amdhsa_user_sgpr_kernarg_segment_ptr 1\n  .amdhsa_system_sgpr_workgroup_id_x 1\n  .amdhsa_float_denorm_mode_32 3\n.end_amdhsa_kernel")
    open(path, "w").write(A.text())
    return path

ad = lambda t0, dt, d=(5,4,3,2), th=(60,30,0), dflt=15: dict(n0=8, n1=20, t0=t0, dt=dt, d=d, th=th, dflt=dflt)
if __name__ == "__main__":
    fs = []
    kw = dict(p1=18, hold=1, cv_at=30, gu_mode="afterY", pretouch="GX")
    fs.append(gen("y_a.s", adapt=ad(130, 29), **kw))
    fs.append(gen("y_b.s", **kw))
    fs.append(gen("y_c.s", adapt=ad(130, 29), tlb=True, **kw))
    fs.append(gen("y_d.s", adapt=ad(130, 29), tlb=True, wsoff=0xfe00000, **kw))
    fs.append(gen("y_e.s", adapt=ad(100, 29), tlb=True, **kw))
    fs.append(gen("y_f.s", adapt=ad(160, 30), tlb=True, **kw))
    print(" ".join(fs)); print(json.dumps(["work/"+f for f in fs]))
```
